```python
import torch

def _softmax(x, axis=-1):
    return torch.softmax(x, dim=axis)

def _gelu(x):
    return torch.nn.functional.gelu(x, approximate='tanh')

def _silu(x):
    return torch.nn.functional.silu(x)

def _sigmoid(x):
    return torch.sigmoid(x)

def _layernorm(x, axis=-1, eps=1e-05):
    m = x.mean(dim=axis, keepdim=True)
    v = x.var(dim=axis, keepdim=True, unbiased=False)
    return (x - m) / torch.sqrt(v + eps)

def _scatter_add(tgt, idx, src, axis=0):
    return tgt.clone().index_add_(axis, idx, src)

def _segment_sum(src, seg, n):
    out = torch.zeros((n,) + src.shape[1:], dtype=src.dtype)
    return out.index_add_(0, seg, src)

def _pad(x, pw):
    flat = tuple((v for pair in reversed(pw) for v in pair))
    return torch.nn.functional.pad(x, flat)
kernel_name = 'standalone__transposed_strided__vision'

def setup_inputs():

    _w = lambda a: (lambda t: t.to(torch.bfloat16) if t.is_floating_point() else t)(torch.as_tensor(a))
    H = W = 224
    C = 96
    return {'x': _w((lambda *s: torch.randn(*s, dtype=torch.bfloat16) * 0.05)(1, H, W, C)), 'w': _w((lambda *s: torch.randn(*s, dtype=torch.bfloat16) * 0.05)(4, 4, C, C)), 'b': _w((lambda *s: torch.randn(*s, dtype=torch.bfloat16) * 0.05)(C))}

def reference(x, w, b):
    B, H, W, C = x.shape
    s, k = (2, 4)
    xe = x[:, :, None, :, None, :].clone()
    xz = _pad(xe, ((0, 0), (0, 0), (0, s - 1), (0, 0), (0, s - 1), (0, 0)))
    xz = xz.reshape(B, H * s, W * s, C)[:, :(H - 1) * s + 1, :(W - 1) * s + 1, :]
    xp = _pad(xz, ((0, 0), (k - 1, k - 1), (k - 1, k - 1), (0, 0)))
    Ho, Wo = ((H - 1) * s + k, (W - 1) * s + k)
    out = 0
    for i in range(k):
        for j in range(k):
            out = out + torch.einsum('bhwc,cd->bhwd', xp[:, i:i + Ho, j:j + Wo, :], w[k - 1 - i, k - 1 - j])
    return out[:, 1:-1, 1:-1, :] + b
```

```python
import sys, argparse

NAME = "standalone__transposed_strided__vision_kernel"

XROW = 4096
NXROWS = 26
WB = NXROWS * XROW
WSLOT = 6160
NSLOT = 4
WPH = WSLOT * NSLOT
LDS_BYTES = WB + 2 * WPH

def wreg(s, t):
    f = s * 6 + t
    if f < 64:
        return "a", 4 * f
    return "v", 224 + 4 * (f - 64)
def rng(kind, base, n):
    return f"{kind}[{base}:{base+n-1}]"
ACC = [0, 24, 48]
BIAS = 72
BFR = 96
OUTP = 120
V_LDS = 132
V_OUT = 133
V_TR = 134
V_WA, V_WB, V_WA1, V_WB1, V_WA2 = 135, 136, 137, 138, 139
V_X0, V_X1 = 140, 141
V_T = 142
V_LANE = 160

S_X, S_W, S_O, S_B = 8, 12, 16, 20
S_WAVE, S_PX, S_HALF, S_PY, S_STRIP, S_R0, S_NG, S_OUT, S_WG, S_T, S_WL, S_XR = 28, 29, 30, 31, 32, 33, 34, 35, 36, 37, 38, 39
S_T2, S_CNT, S_T3 = 40, 41, 42
S_XL = 43
S_STAMP = 60

class Prog:
    def __init__(self):
        self.L = []
    def __call__(self, s):
        self.L.append(s)
    def text(self):
        return "\n".join(("" if l.endswith(":") else "    ") + l for l in self.L) + "\n"

def mfma(acc, t, s, bf, first):
    k, b = wreg(s, t)
    d = rng("v", acc + 4 * t, 4)
    c = rng("v", BIAS + 4 * t, 4) if first else d
    return f"v_mfma_f32_16x16x32_bf16 {d}, {rng(k, b, 4)}, {rng('v', bf, 4)}, {c}"

def bread(bf, g, s):
    tap, ks = divmod(s, 3)
    a, b = tap >> 1, tap & 1
    off = g * XROW + (1 - a) * XROW + (1 - b) * 224 + ks * 64
    return f"ds_read_b128 {rng('v', bf, 4)}, v{V_LDS} offset:{off}"

def trreads(s):
    L = []
    slot = s % NSLOT
    for t in range(6):
        j, tb = t >> 1, t & 1
        k, b = wreg(s, t)
        for h in range(2):
            off = slot * WSLOT + h * 768 + j * 64 + tb * 8
            L.append(f"ds_read_b64_tr_b16 {rng(k, b + 2 * h, 2)}, v{V_TR} offset:{off}")
    return L

def wdma(s):
    slot = s % NSLOT
    tap, ks = divmod(s, 3)
    a, b = tap >> 1, tap & 1
    goff = (2 * a * 4 + 2 * b) * 18432 + ks * 6144
    L = []
    L.append(f"s_add_u32 m0, s{S_WL}, {slot * WSLOT}")
    L.append(f"s_add_u32 s{S_T}, s{S_WG}, {goff}")
    L.append(f"buffer_load_dwordx4 v{V_WA}, s[{S_W}:{S_W+3}], s{S_T} offen lds")
    L.append(f"buffer_load_dwordx4 v{V_WB}, s[{S_W}:{S_W+3}], s{S_T} offen offset:1024 lds")
    L.append(f"buffer_load_dwordx4 v{V_WA1}, s[{S_W}:{S_W+3}], s{S_T} offen offset:2048 lds")
    L.append(f"s_add_u32 m0, s{S_WL}, {slot * WSLOT + 3080}")
    L.append("s_nop 0")
    L.append(f"buffer_load_dwordx4 v{V_WA1}, s[{S_W}:{S_W+3}], s{S_T} offen lds")
    L.append(f"buffer_load_dwordx4 v{V_WB1}, s[{S_W}:{S_W+3}], s{S_T} offen offset:1024 lds")
    L.append(f"buffer_load_dwordx4 v{V_WA2}, s[{S_W}:{S_W+3}], s{S_T} offen offset:2048 lds")
    return L

def xdma(rho):
    L = []
    L.append(f"s_add_u32 s{S_T2}, s{S_XR}, {rho}")
    if rho in (0, 24, 25):
        L.append(f"s_cmp_lt_u32 s{S_T2}, 224")
        L.append(f"s_cselect_b32 s{S_X+2}, s{S_T3}, 0")
    L.append(f"s_mul_i32 s{S_T2}, s{S_T2}, 43008")
    L.append(f"s_add_u32 m0, s{S_XL}, {rho * XROW}")
    L.append("s_nop 0")
    L.append(f"buffer_load_dwordx4 v{V_X0}, s[{S_X}:{S_X+3}], s{S_T2} offen lds")
    L.append(f"s_add_u32 m0, s{S_XL}, {rho * XROW + 1024}")
    L.append("s_nop 0")
    L.append(f"buffer_load_dwordx4 v{V_X1}, s[{S_X}:{S_X+3}], s{S_T2} offen lds")
    if rho in (0, 24, 25):
        L.append(f"s_mov_b32 s{S_X+2}, s{S_T3}")
    return L

def epilogue(acc, sf):
    L = []
    for j in range(3):
        o = OUTP + 4 * j
        t0, t1 = acc + 8 * j, acc + 8 * j + 4
        L.append(f"v_cvt_pk_bf16_f32 v{o}, v{t0}, v{t0+1}")
        L.append(f"v_cvt_pk_bf16_f32 v{o+1}, v{t0+2}, v{t0+3}")
        L.append(f"v_cvt_pk_bf16_f32 v{o+2}, v{t1}, v{t1+1}")
        L.append(f"v_cvt_pk_bf16_f32 v{o+3}, v{t1+2}, v{t1+3}")
        L.append(f"buffer_store_dwordx4 {rng('v', o, 4)}, v{V_OUT}, s[{S_O}:{S_O+3}], s{S_OUT} offen offset:{64*j} {sf}".rstrip())
    L.append(f"s_add_u32 s{S_OUT}, s{S_OUT}, {2*448*192}")
    return L

def interleave(P, mfmas, fillers, start=0, per=2):
    fi = 0
    for i, m in enumerate(mfmas):
        P(m)
        if i >= start:
            n = 0
            while fi < len(fillers) and n < per:
                P(fillers[fi]); fi += 1; n += 1
    while fi < len(fillers):
        P(fillers[fi]); fi += 1

def stamp(P, args, idx):
    if args.stamps:
        P(f"s_memrealtime s[{S_STAMP+2*idx}:{S_STAMP+2*idx+1}]")

def gen(args):
    G = args.G
    sf = args.store_flags
    P = Prog()
    hdr = f"""; Transposed conv 4x4 stride 2, x(1,224,224,96) bf16 -> out(1,448,448,96) bf16, gfx950.
; @launch grid=(256,1,1) block=(256,1,1) lds={LDS_BYTES}
.amdgcn_target "amdgcn-amd-amdhsa--gfx950"
.text
.globl {NAME}
.p2align 8
.type {NAME},@function
{NAME}:
"""
    stamp(P, args, 0)
    P("s_load_dwordx4 s[4:7], s[0:1], 0")
    P("s_load_dwordx4 s[24:27], s[0:1], 16")
    if args.stamps:
        P("s_load_dwordx2 s[58:59], s[0:1], 40")
    P("s_and_b32 s3, s2, 7")
    P("s_lshr_b32 s44, s2, 3")
    P(f"s_and_b32 s{S_PY}, s44, 1")
    P("s_lshr_b32 s45, s44, 1")
    P("s_lshl_b32 s3, s3, 4")
    P("s_add_u32 s3, s3, s45")
    P("s_cmp_ge_u32 s2, 256")
    P("s_cbranch_scc1 L_end")
    P("s_cmp_ge_u32 s3, 126")
    P("s_cbranch_scc1 L_end")
    P(f"s_mul_i32 s{S_STRIP}, s3, 7282")
    P(f"s_lshr_b32 s{S_STRIP}, s{S_STRIP}, 16")
    P(f"s_mul_i32 s45, s{S_STRIP}, 9")
    P("s_sub_u32 s45, s3, s45")
    P(f"s_mul_i32 s{S_R0}, s45, 25")
    P(f"v_lshrrev_b32 v{V_T}, 6, v0")
    P(f"v_and_b32 v{V_LANE}, 63, v0")
    P("s_nop 0")
    P(f"v_readfirstlane_b32 s{S_WAVE}, v{V_T}")
    P("s_nop 3")
    P(f"s_and_b32 s{S_PX}, s{S_WAVE}, 1")
    P(f"s_lshr_b32 s{S_HALF}, s{S_WAVE}, 1")
    P("s_cmp_lt_u32 s45, 8")
    P(f"s_cselect_b32 s{S_NG}, 12, 11")
    P(f"s_cmp_eq_u32 s{S_HALF}, 0")
    P(f"s_cselect_b32 s{S_NG}, 13, s{S_NG}")
    l = V_LANE
    q, p = V_T, V_T + 1
    P(f"v_lshrrev_b32 v{q}, 4, v{l}")
    P(f"v_and_b32 v{p}, 15, v{l}")
    P(f"v_add_u32 v{V_T+2}, s{S_PX}, v{p}")
    P(f"v_mul_u32_u24 v{V_T+2}, 224, v{V_T+2}")
    P(f"v_lshl_add_u32 v{V_T+2}, v{q}, 4, v{V_T+2}")
    P(f"s_mul_i32 s46, s{S_HALF}, {13*XROW}")
    P(f"v_add_u32 v{V_LDS}, s46, v{V_T+2}")
    P(f"v_mul_u32_u24 v{V_T+2}, 384, v{p}")
    P(f"v_lshl_add_u32 v{V_T+2}, v{q}, 4, v{V_T+2}")
    P(f"s_mul_i32 s46, s{S_PX}, 192")
    P(f"v_add_u32 v{V_OUT}, s46, v{V_T+2}")
    P(f"s_mul_i32 s46, s{S_HALF}, 13")
    P(f"s_add_u32 s46, s46, s{S_R0}")
    P("s_lshl_b32 s46, s46, 1")
    P(f"s_add_u32 s46, s46, s{S_PY}")
    P("s_mul_i32 s46, s46, 448")
    P(f"s_lshl_b32 s47, s{S_STRIP}, 5")
    P("s_add_u32 s46, s46, s47")
    P(f"s_mul_i32 s{S_OUT}, s46, 192")
    P(f"v_and_b32 v{V_T+2}, 1, v{q}")
    P(f"v_mul_u32_u24 v{V_T+2}, 3080, v{V_T+2}")
    P(f"v_lshrrev_b32 v{V_T+3}, 1, v{q}")
    P(f"v_mul_u32_u24 v{V_T+3}, 1536, v{V_T+3}")
    P(f"v_add_u32 v{V_T+2}, v{V_T+2}, v{V_T+3}")
    P(f"v_bfe_u32 v{V_T+3}, v{l}, 2, 2")
    P(f"v_mul_u32_u24 v{V_T+3}, 192, v{V_T+3}")
    P(f"v_add_u32 v{V_T+2}, v{V_T+2}, v{V_T+3}")
    P(f"v_and_b32 v{V_T+3}, 3, v{l}")
    P(f"v_lshl_add_u32 v{V_T+2}, v{V_T+3}, 4, v{V_T+2}")
    P(f"s_mul_i32 s{S_WL}, s{S_PX}, {WPH}")
    P(f"s_add_u32 s{S_WL}, s{S_WL}, {WB}")
    P(f"v_add_u32 v{V_TR}, s{S_WL}, v{V_T+2}")
    P(f"v_lshlrev_b32 v{V_WA}, 4, v{l}")
    P(f"v_lshrrev_b32 v{V_T+2}, 5, v{l}")
    P(f"v_mul_u32_u24 v{V_T+2}, 1536, v{V_T+2}")
    P(f"v_add_u32 v{V_WB}, v{V_WA}, v{V_T+2}")
    P(f"v_add_u32 v{V_WA1}, 1536, v{V_WA}")
    P(f"v_add_u32 v{V_WB1}, 1536, v{V_WB}")
    P(f"v_add_u32 v{V_WA2}, 3072, v{V_WA}")
    P(f"s_sub_u32 s46, 1, s{S_PY}")
    P("s_lshl_b32 s46, s46, 2")
    P(f"s_sub_u32 s47, 1, s{S_PX}")
    P("s_add_u32 s46, s46, s47")
    P(f"s_mul_i32 s{S_WG}, s46, 18432")
    P(f"s_lshl_b32 s46, s{S_PX}, 7")
    P(f"s_lshl_b32 s{S_XL}, s{S_PX}, 11")
    P(f"s_lshl_b32 s47, s{S_STRIP}, 4")
    P("s_sub_u32 s47, s47, 1")
    for i, vx in enumerate((V_X0, V_X1)):
        t = V_T + 2
        P(f"v_add_u32 v{t}, s46, v{l}")
        if i:
            P(f"v_add_u32 v{t}, 64, v{t}")
        P(f"v_mul_u32_u24 v{t+1}, 4682, v{t}")
        P(f"v_lshrrev_b32 v{t+1}, 16, v{t+1}")
        P(f"v_mul_u32_u24 v{t+2}, 14, v{t+1}")
        P(f"v_sub_u32 v{t+2}, v{t}, v{t+2}")
        P(f"v_add_u32 v{t+3}, s47, v{t+1}")
        P(f"v_mul_lo_u32 v{t+4}, v{t+3}, s48") if False else None
        P(f"v_mul_i32_i24 v{t+4}, 192, v{t+3}")
        P(f"v_lshl_add_u32 v{t+4}, v{t+2}, 4, v{t+4}")
        P(f"v_cmp_gt_u32 vcc, 12, v{t+2}")
        P(f"v_cmp_gt_u32 s[48:49], 18, v{t+1}") if False else None
        P(f"v_mov_b32 v{t+5}, 0x80000000")
        P("s_nop 0")
        P(f"v_cndmask_b32 v{t+4}, v{t+5}, v{t+4}, vcc")
        P(f"v_cmp_gt_u32 vcc, 18, v{t+1}")
        P("s_nop 1")
        P(f"v_cndmask_b32 v{t+4}, v{t+5}, v{t+4}, vcc")
        P(f"v_cmp_gt_u32 vcc, 224, v{t+3}")
        P("s_nop 1")
        P(f"v_cndmask_b32 v{vx}, v{t+5}, v{t+4}, vcc")
    P(f"s_add_u32 s{S_XR}, s{S_R0}, s{S_PY}")
    P(f"s_sub_u32 s{S_XR}, s{S_XR}, 1")
    P(f"s_mov_b32 s{S_T3}, 9633792")
    P(f"v_lshlrev_b32 v{V_T+2}, 4, v{q}")
    P(f"s_lshl_b32 s46, s44, 2")
    P(f"s_add_u32 s46, s46, s{S_WAVE}")
    P("s_mul_i32 s46, s46, 2304")
    P(f"v_lshlrev_b32 v{V_T+3}, 7, v{l}")
    P(f"v_add_u32 v{V_T+3}, s46, v{V_T+3}")
    P(f"v_cmp_gt_u32 vcc, 18, v{l}")
    P(f"v_mov_b32 v{V_T+4}, 0x80000000")
    P("s_nop 0")
    P(f"v_cndmask_b32 v{V_T+3}, v{V_T+4}, v{V_T+3}, vcc")
    P("s_waitcnt lgkmcnt(0)")
    stamp(P, args, 1)
    for (r, lo, sz) in ((S_X, 4, 9633792), (S_W, 6, 294912), (S_B, 24, 192), (S_O, 26, 38535168)):
        P(f"s_mov_b32 s{r}, s{lo}")
        P(f"s_mov_b32 s{r+1}, s{lo+1}")
        P(f"s_mov_b32 s{r+2}, {sz}")
        P(f"s_mov_b32 s{r+3}, 0x20000")
    if args.warm:
        P(f"buffer_load_dword v{V_T+6}, v{V_T+3}, s[{S_W}:{S_W+3}], 0 offen")
    for j in range(3):
        P(f"buffer_load_dwordx4 {rng('v', OUTP+4*j, 4)}, v{V_T+2}, s[{S_B}:{S_B+3}], 0 offen offset:{64*j}")
    P(f"s_cmp_eq_u32 s{S_HALF}, 0")
    P("s_cbranch_scc0 L_xrole0")
    for s in range(3):
        for i in wdma(s): P(i)
    P("s_branch L_role0_done")
    P("L_xrole0:")
    first = []
    for g in range(G):
        first += [1 + g, 14 + g]
    first = [r for r in dict.fromkeys(first + [0, 13])]
    rest = []
    for g in range(G, 12):
        rest += [1 + g, 14 + g]
    rest += [13] if False else []
    rest = [r for r in dict.fromkeys(rest) if r not in first and r <= 25]
    assert sorted(first + rest) == list(range(26)), (first, rest)
    for r in first + rest:
        for i in xdma(r): P(i)
    n_first, n_rest = 2 * len(first), 2 * len(rest)
    P("L_role0_done:")
    stamp(P, args, 2)
    def bfr(s, g):
        return BFR + 4 * ((s & 1) * 3 + g)
    for s in range(13):
        pre = []
        fill = []
        if s >= 1:
            P("s_waitcnt lgkmcnt(0)")
        mf = []
        if s >= 1:
            for g in range(G):
                for t in range(6):
                    mf.append(mfma(ACC[g], t, s - 1, bfr(s - 1, g), s - 1 == 0))
        if s <= 11:
            head = mf[:2]; mf = mf[2:]
            for m in head: P(m)
            P(f"s_cmp_eq_u32 s{S_HALF}, 0")
            P(f"s_cbranch_scc0 L_xw{s}")
            nw = 12 if s <= 9 else (6 if s == 10 else 0)
            P(f"s_waitcnt vmcnt({nw})")
            P(f"s_branch L_wd{s}")
            P(f"L_xw{s}:")
            if s == 0:
                P(f"s_waitcnt vmcnt({n_rest})")
            elif s == 11:
                P("s_waitcnt vmcnt(0)")
            else:
                P("s_nop 0")
            P(f"L_wd{s}:")
            P("s_barrier")
            if s == 0:
                stamp(P, args, 3)
                for j in range(3):
                    for i in range(4):
                        P(f"v_lshlrev_b32 v{BIAS+8*j+2*i}, 16, v{OUTP+4*j+i}")
                        P(f"v_and_b32 v{BIAS+8*j+2*i+1}, 0xffff0000, v{OUTP+4*j+i}")
            if s + 3 <= 11:
                P(f"s_cbranch_scc0 L_nw{s}")
                for i in wdma(s + 3): P(i)
                P(f"L_nw{s}:")
            fill = [bread(bfr(s, g), g, s) for g in range(G)] + trreads(s)
            interleave(P, mf, fill, start=0, per=2)
        else:
            fill = [bread(BFR + 24 - 8 + 0, G, 0), bread(BFR + 24 - 8 + 4, G, 1)]
            interleave(P, mf, [], start=0)
    stamp(P, args, 4)
    def ring(s): return BFR + 4 * (s % 4)
    P("s_nop 7")
    P(bread(ring(0), G, 0))
    P(bread(ring(1), G, 1))
    for g in range(G - 1):
        for i in epilogue(ACC[g], sf): P(i)
    prev = ACC[G - 1]
    cur = ACC[0] if G - 1 != 0 else ACC[1]
    sets = [cur, prev]
    P(f"s_sub_u32 s{S_CNT}, s{S_NG}, {G}")
    P(f"v_add_u32 v{V_LDS}, {G*XROW}, v{V_LDS}")
    def group(accp, accq, goff):
        epi = epilogue(accq, sf)
        ei = 0
        for s in range(12):
            P(f"s_waitcnt lgkmcnt(1)")
            fill = []
            ns = s + 2
            if ns < 12:
                fill.append(bread(ring(ns), goff, ns))
            else:
                fill.append(bread(ring(ns), goff + 1, ns - 12))
            if s >= 1:
                take = 5 if s <= 3 else 1
                fill += epi[ei:ei + take]; ei += take
            mf = [mfma(accp, t, s, ring(s), s == 0) for t in range(6)]
            interleave(P, mf, fill, start=0, per=1 if len(fill) <= 6 else 2)
        assert ei >= len(epi)
    P("L_loop:")
    group(sets[0], sets[1], 0)
    P(f"s_sub_u32 s{S_CNT}, s{S_CNT}, 1")
    P(f"s_cmp_eq_u32 s{S_CNT}, 0")
    P("s_cbranch_scc1 L_fin0")
    group(sets[1], sets[0], 1)
    P(f"v_add_u32 v{V_LDS}, {2*XROW}, v{V_LDS}")
    P(f"s_sub_u32 s{S_CNT}, s{S_CNT}, 1")
    P(f"s_cmp_lg_u32 s{S_CNT}, 0")
    P("s_cbranch_scc1 L_loop")
    P("s_nop 7")
    for i in epilogue(sets[1], sf): P(i)
    P("s_branch L_done")
    P("L_fin0:")
    P("s_nop 7")
    for i in epilogue(sets[0], sf): P(i)
    P("L_done:")
    if args.stamps:
        stamp(P, args, 5)
        P("s_waitcnt vmcnt(0)")
        stamp(P, args, 6)
        P("s_waitcnt lgkmcnt(0)")
        P(f"s_lshl_b32 s46, s2, 2"); P(f"s_add_u32 s46, s46, s{S_WAVE}"); P("s_lshl_b32 s46, s46, 6")
        P(f"v_mov_b32 v{V_T}, s46")
        P(f"v_cmp_eq_u32 vcc, 0, v{V_LANE}")
        P("s_and_saveexec_b64 s[48:49], vcc")
        for i in range(7):
            P(f"v_mov_b32 v{V_T+2}, s{S_STAMP+2*i}"); P(f"v_mov_b32 v{V_T+3}, s{S_STAMP+2*i+1}")
            P(f"global_store_dwordx2 v{V_T}, v[{V_T+2}:{V_T+3}], s[58:59] offset:{8*i}")
            P("s_nop 1")
    P("L_end:")
    P("s_endpgm")
    ftr = f"""
.section .rodata,"a"
.p2align 6
.amdhsa_kernel {NAME}
  .amdhsa_next_free_vgpr 512
  .amdhsa_next_free_sgpr 102
  .amdhsa_accum_offset 256
  .amdhsa_group_segment_fixed_size 0
  .amdhsa_kernarg_size 48
  .amdhsa_user_sgpr_count 2
  .amdhsa_user_sgpr_kernarg_segment_ptr 1
  .amdhsa_system_sgpr_workgroup_id_x 1
.end_amdhsa_kernel
"""
    P.L = [x for x in P.L if x is not None]
    return hdr + P.text() + ftr

if __name__ == "__main__":
    ap = argparse.ArgumentParser()
    ap.add_argument("-o", default="standalone__transposed_strided__vision.s")
    ap.add_argument("--G", type=int, default=2)
    ap.add_argument("--store-flags", default="sc0 sc1")
    ap.add_argument("--stamps", type=int, default=0)
    ap.add_argument("--warm", type=int, default=1)
    args = ap.parse_args()
    open(args.o, "w").write(gen(args))
```

```python
import sys, argparse

NAME = "standalone__transposed_strided__vision_kernel"

XROW = 4096
NXROWS = 26
WB = NXROWS * XROW
WSLOT = 6160
NSLOT = 4
WPH = WSLOT * NSLOT
LDS_BYTES = WB + 2 * WPH

def wreg(s, t):
    f = s * 6 + t
    if f < 64:
        return "a", 4 * f
    return "v", 224 + 4 * (f - 64)
def rng(kind, base, n):
    return f"{kind}[{base}:{base+n-1}]"
ACC = [0, 24, 48]
BIAS = 72
BFR = 96
OUTP = 120
V_LDS = 132
V_OUT = 133
V_TR = 134
V_WA, V_WB, V_WA1, V_WB1, V_WA2 = 135, 136, 137, 138, 139
V_X0, V_X1 = 140, 141
V_T = 142
V_LANE = 160

S_X, S_W, S_O, S_B = 8, 12, 16, 20
S_WAVE, S_PX, S_HALF, S_PY, S_STRIP, S_R0, S_NG, S_OUT, S_WG, S_T, S_WL, S_XR = 28, 29, 30, 31, 32, 33, 34, 35, 36, 37, 38, 39
S_T2, S_CNT, S_T3 = 40, 41, 42
S_XL = 43
S_STAMP = 60

class Prog:
    def __init__(self):
        self.L = []
    def __call__(self, s):
        self.L.append(s)
    def text(self):
        return "\n".join(("" if l.endswith(":") else "    ") + l for l in self.L) + "\n"

def mfma(acc, t, s, bf, first):
    k, b = wreg(s, t)
    d = rng("v", acc + 4 * t, 4)
    c = rng("v", BIAS + 4 * t, 4) if first else d
    return f"v_mfma_f32_16x16x32_bf16 {d}, {rng(k, b, 4)}, {rng('v', bf, 4)}, {c}"

def bread(bf, g, s):
    tap, ks = divmod(s, 3)
    a, b = tap >> 1, tap & 1
    off = g * XROW + (1 - a) * XROW + (1 - b) * 224 + ks * 64
    return f"ds_read_b128 {rng('v', bf, 4)}, v{V_LDS} offset:{off}"

def trreads(s):
    L = []
    slot = s % NSLOT
    for t in range(6):
        j, tb = t >> 1, t & 1
        k, b = wreg(s, t)
        for h in range(2):
            off = slot * WSLOT + h * 768 + j * 64 + tb * 8
            L.append(f"ds_read_b64_tr_b16 {rng(k, b + 2 * h, 2)}, v{V_TR} offset:{off}")
    return L

def wdma(s):
    slot = s % NSLOT
    tap, ks = divmod(s, 3)
    a, b = tap >> 1, tap & 1
    goff = (2 * a * 4 + 2 * b) * 18432 + ks * 6144
    L = []
    L.append(f"s_add_u32 m0, s{S_WL}, {slot * WSLOT}")
    L.append(f"s_add_u32 s{S_T}, s{S_WG}, {goff}")
    L.append(f"buffer_load_dwordx4 v{V_WA}, s[{S_W}:{S_W+3}], s{S_T} offen lds")
    L.append(f"buffer_load_dwordx4 v{V_WB}, s[{S_W}:{S_W+3}], s{S_T} offen offset:1024 lds")
    L.append(f"buffer_load_dwordx4 v{V_WA1}, s[{S_W}:{S_W+3}], s{S_T} offen offset:2048 lds")
    L.append(f"s_add_u32 m0, s{S_WL}, {slot * WSLOT + 3080}")
    L.append("s_nop 0")
    L.append(f"buffer_load_dwordx4 v{V_WA1}, s[{S_W}:{S_W+3}], s{S_T} offen lds")
    L.append(f"buffer_load_dwordx4 v{V_WB1}, s[{S_W}:{S_W+3}], s{S_T} offen offset:1024 lds")
    L.append(f"buffer_load_dwordx4 v{V_WA2}, s[{S_W}:{S_W+3}], s{S_T} offen offset:2048 lds")
    return L

def xdma(rho):
    L = []
    L.append(f"s_add_u32 s{S_T2}, s{S_XR}, {rho}")
    if rho in (0, 24, 25):
        L.append(f"s_cmp_lt_u32 s{S_T2}, 224")
        L.append(f"s_cselect_b32 s{S_X+2}, s{S_T3}, 0")
    L.append(f"s_mul_i32 s{S_T2}, s{S_T2}, 43008")
    L.append(f"s_add_u32 m0, s{S_XL}, {rho * XROW}")
    L.append("s_nop 0")
    L.append(f"buffer_load_dwordx4 v{V_X0}, s[{S_X}:{S_X+3}], s{S_T2} offen lds")
    L.append(f"s_add_u32 m0, s{S_XL}, {rho * XROW + 1024}")
    L.append("s_nop 0")
    L.append(f"buffer_load_dwordx4 v{V_X1}, s[{S_X}:{S_X+3}], s{S_T2} offen lds")
    if rho in (0, 24, 25):
        L.append(f"s_mov_b32 s{S_X+2}, s{S_T3}")
    return L

def epilogue(acc, sf):
    L = []
    for j in range(3):
        o = OUTP + 4 * j
        t0, t1 = acc + 8 * j, acc + 8 * j + 4
        L.append(f"v_cvt_pk_bf16_f32 v{o}, v{t0}, v{t0+1}")
        L.append(f"v_cvt_pk_bf16_f32 v{o+1}, v{t0+2}, v{t0+3}")
        L.append(f"v_cvt_pk_bf16_f32 v{o+2}, v{t1}, v{t1+1}")
        L.append(f"v_cvt_pk_bf16_f32 v{o+3}, v{t1+2}, v{t1+3}")
        L.append(f"buffer_store_dwordx4 {rng('v', o, 4)}, v{V_OUT}, s[{S_O}:{S_O+3}], s{S_OUT} offen offset:{64*j} {sf}".rstrip())
    L.append(f"s_add_u32 s{S_OUT}, s{S_OUT}, {2*448*192}")
    return L

def interleave(P, mfmas, fillers, start=0, per=2):
    fi = 0
    for i, m in enumerate(mfmas):
        P(m)
        if i >= start:
            n = 0
            while fi < len(fillers) and n < per:
                P(fillers[fi]); fi += 1; n += 1
    while fi < len(fillers):
        P(fillers[fi]); fi += 1

def stamp(P, args, idx):
    if args.stamps == 1:
        P(f"s_memrealtime s[{S_STAMP+2*idx}:{S_STAMP+2*idx+1}]")
    elif args.stamps == 2:
        if idx == 0:
            P(f"s_memrealtime s[{S_STAMP}:{S_STAMP+1}]")
            P(f"s_memtime s[{S_STAMP+14}:{S_STAMP+15}]")
        else:
            P(f"s_memtime s[{S_STAMP+2*idx}:{S_STAMP+2*idx+1}]")

def gen(args):
    G = args.G
    sf = args.store_flags
    P = Prog()
    hdr = f"""; Transposed conv 4x4 stride 2, x(1,224,224,96) bf16 -> out(1,448,448,96) bf16, gfx950.
; @launch grid=(256,1,1) block=(256,1,1) lds={LDS_BYTES}
.amdgcn_target "amdgcn-amd-amdhsa--gfx950"
.text
.globl {NAME}
.p2align 8
.type {NAME},@function
{NAME}:
"""
    stamp(P, args, 0)
    if args.delay:
        P("s_memrealtime s[50:51]")
        P("s_waitcnt lgkmcnt(0)")
        P(f"s_add_u32 s52, s50, {args.delay}")
        P("L_spin:")
        P("s_memrealtime s[50:51]")
        P("s_waitcnt lgkmcnt(0)")
        P("s_sub_u32 s53, s52, s50")
        P("s_cmp_gt_i32 s53, 0")
        P("s_cbranch_scc1 L_spin")
    P("s_load_dwordx4 s[4:7], s[0:1], 0")
    P("s_load_dwordx4 s[24:27], s[0:1], 16")
    if args.stamps:
        P("s_load_dwordx2 s[58:59], s[0:1], 40")
    P("s_and_b32 s3, s2, 7")
    P("s_lshr_b32 s44, s2, 3")
    P(f"s_and_b32 s{S_PY}, s44, 1")
    P("s_lshr_b32 s45, s44, 1")
    P("s_lshl_b32 s3, s3, 4")
    P("s_add_u32 s3, s3, s45")
    P("s_cmp_ge_u32 s2, 256")
    P("s_cbranch_scc1 L_end")
    P("s_cmp_ge_u32 s3, 126")
    P("s_cbranch_scc1 L_end")
    P(f"s_mul_i32 s{S_STRIP}, s3, 7282")
    P(f"s_lshr_b32 s{S_STRIP}, s{S_STRIP}, 16")
    P(f"s_mul_i32 s45, s{S_STRIP}, 9")
    P("s_sub_u32 s45, s3, s45")
    P(f"s_mul_i32 s{S_R0}, s45, 25")
    P(f"v_lshrrev_b32 v{V_T}, 6, v0")
    P(f"v_and_b32 v{V_LANE}, 63, v0")
    P("s_nop 0")
    P(f"v_readfirstlane_b32 s{S_WAVE}, v{V_T}")
    P("s_nop 3")
    P(f"s_and_b32 s{S_PX}, s{S_WAVE}, 1")
    P(f"s_lshr_b32 s{S_HALF}, s{S_WAVE}, 1")
    P("s_cmp_lt_u32 s45, 8")
    P(f"s_cselect_b32 s{S_NG}, 12, 11")
    P(f"s_cmp_eq_u32 s{S_HALF}, 0")
    P(f"s_cselect_b32 s{S_NG}, 13, s{S_NG}")
    l = V_LANE
    q, p = V_T, V_T + 1
    P(f"v_lshrrev_b32 v{q}, 4, v{l}")
    P(f"v_and_b32 v{p}, 15, v{l}")
    P(f"v_add_u32 v{V_T+2}, s{S_PX}, v{p}")
    P(f"v_mul_u32_u24 v{V_T+2}, 224, v{V_T+2}")
    P(f"v_lshl_add_u32 v{V_T+2}, v{q}, 4, v{V_T+2}")
    P(f"s_mul_i32 s46, s{S_HALF}, {13*XROW}")
    P(f"v_add_u32 v{V_LDS}, s46, v{V_T+2}")
    P(f"v_mul_u32_u24 v{V_T+2}, 384, v{p}")
    P(f"v_lshl_add_u32 v{V_T+2}, v{q}, 4, v{V_T+2}")
    P(f"s_mul_i32 s46, s{S_PX}, 192")
    P(f"v_add_u32 v{V_OUT}, s46, v{V_T+2}")
    P(f"s_mul_i32 s46, s{S_HALF}, 13")
    P(f"s_add_u32 s46, s46, s{S_R0}")
    P("s_lshl_b32 s46, s46, 1")
    P(f"s_add_u32 s46, s46, s{S_PY}")
    P("s_mul_i32 s46, s46, 448")
    P(f"s_lshl_b32 s47, s{S_STRIP}, 5")
    P("s_add_u32 s46, s46, s47")
    P(f"s_mul_i32 s{S_OUT}, s46, 192")
    P(f"v_and_b32 v{V_T+2}, 1, v{q}")
    P(f"v_mul_u32_u24 v{V_T+2}, 3080, v{V_T+2}")
    P(f"v_lshrrev_b32 v{V_T+3}, 1, v{q}")
    P(f"v_mul_u32_u24 v{V_T+3}, 1536, v{V_T+3}")
    P(f"v_add_u32 v{V_T+2}, v{V_T+2}, v{V_T+3}")
    P(f"v_bfe_u32 v{V_T+3}, v{l}, 2, 2")
    P(f"v_mul_u32_u24 v{V_T+3}, 192, v{V_T+3}")
    P(f"v_add_u32 v{V_T+2}, v{V_T+2}, v{V_T+3}")
    P(f"v_and_b32 v{V_T+3}, 3, v{l}")
    P(f"v_lshl_add_u32 v{V_T+2}, v{V_T+3}, 4, v{V_T+2}")
    P(f"s_mul_i32 s{S_WL}, s{S_PX}, {WPH}")
    P(f"s_add_u32 s{S_WL}, s{S_WL}, {WB}")
    P(f"v_add_u32 v{V_TR}, s{S_WL}, v{V_T+2}")
    P(f"v_lshlrev_b32 v{V_WA}, 4, v{l}")
    P(f"v_lshrrev_b32 v{V_T+2}, 5, v{l}")
    P(f"v_mul_u32_u24 v{V_T+2}, 1536, v{V_T+2}")
    P(f"v_add_u32 v{V_WB}, v{V_WA}, v{V_T+2}")
    P(f"v_add_u32 v{V_WA1}, 1536, v{V_WA}")
    P(f"v_add_u32 v{V_WB1}, 1536, v{V_WB}")
    P(f"v_add_u32 v{V_WA2}, 3072, v{V_WA}")
    P(f"s_sub_u32 s46, 1, s{S_PY}")
    P("s_lshl_b32 s46, s46, 2")
    P(f"s_sub_u32 s47, 1, s{S_PX}")
    P("s_add_u32 s46, s46, s47")
    P(f"s_mul_i32 s{S_WG}, s46, 18432")
    P(f"s_lshl_b32 s46, s{S_PX}, 7")
    P(f"s_lshl_b32 s{S_XL}, s{S_PX}, 11")
    P(f"s_lshl_b32 s47, s{S_STRIP}, 4")
    P("s_sub_u32 s47, s47, 1")
    for i, vx in enumerate((V_X0, V_X1)):
        t = V_T + 2
        P(f"v_add_u32 v{t}, s46, v{l}")
        if i:
            P(f"v_add_u32 v{t}, 64, v{t}")
        P(f"v_mul_u32_u24 v{t+1}, 4682, v{t}")
        P(f"v_lshrrev_b32 v{t+1}, 16, v{t+1}")
        P(f"v_mul_u32_u24 v{t+2}, 14, v{t+1}")
        P(f"v_sub_u32 v{t+2}, v{t}, v{t+2}")
        P(f"v_add_u32 v{t+3}, s47, v{t+1}")
        P(f"v_mul_lo_u32 v{t+4}, v{t+3}, s48") if False else None
        P(f"v_mul_i32_i24 v{t+4}, 192, v{t+3}")
        P(f"v_lshl_add_u32 v{t+4}, v{t+2}, 4, v{t+4}")
        P(f"v_cmp_gt_u32 vcc, 12, v{t+2}")
        P(f"v_cmp_gt_u32 s[48:49], 18, v{t+1}") if False else None
        P(f"v_mov_b32 v{t+5}, 0x80000000")
        P("s_nop 0")
        P(f"v_cndmask_b32 v{t+4}, v{t+5}, v{t+4}, vcc")
        P(f"v_cmp_gt_u32 vcc, 18, v{t+1}")
        P("s_nop 1")
        P(f"v_cndmask_b32 v{t+4}, v{t+5}, v{t+4}, vcc")
        P(f"v_cmp_gt_u32 vcc, 224, v{t+3}")
        P("s_nop 1")
        P(f"v_cndmask_b32 v{vx}, v{t+5}, v{t+4}, vcc")
    P(f"s_add_u32 s{S_XR}, s{S_R0}, s{S_PY}")
    P(f"s_sub_u32 s{S_XR}, s{S_XR}, 1")
    P(f"s_mov_b32 s{S_T3}, 9633792")
    P(f"v_lshlrev_b32 v{V_T+2}, 4, v{q}")
    P(f"s_lshl_b32 s46, s44, 2")
    P(f"s_add_u32 s46, s46, s{S_WAVE}")
    P("s_mul_i32 s46, s46, 2304")
    P(f"v_lshlrev_b32 v{V_T+3}, 7, v{l}")
    P(f"v_add_u32 v{V_T+3}, s46, v{V_T+3}")
    P(f"v_cmp_gt_u32 vcc, 18, v{l}")
    P(f"v_mov_b32 v{V_T+4}, 0x80000000")
    P("s_nop 0")
    P(f"v_cndmask_b32 v{V_T+3}, v{V_T+4}, v{V_T+3}, vcc")
    P("s_waitcnt lgkmcnt(0)")
    stamp(P, args, 1)
    for (r, lo, sz) in ((S_X, 4, 9633792), (S_W, 6, 294912), (S_B, 24, 192), (S_O, 26, 38535168)):
        P(f"s_mov_b32 s{r}, s{lo}")
        P(f"s_mov_b32 s{r+1}, s{lo+1}")
        P(f"s_mov_b32 s{r+2}, {sz}")
        P(f"s_mov_b32 s{r+3}, 0x20000")
    if args.warm:
        P(f"buffer_load_dword v{V_T+6}, v{V_T+3}, s[{S_W}:{S_W+3}], 0 offen")
    for j in range(3):
        P(f"buffer_load_dwordx4 {rng('v', OUTP+4*j, 4)}, v{V_T+2}, s[{S_B}:{S_B+3}], 0 offen offset:{64*j}")
    P(f"s_cmp_eq_u32 s{S_HALF}, 0")
    P("s_cbranch_scc0 L_xrole0")
    for s in range(3):
        for i in wdma(s): P(i)
    P("s_branch L_role0_done")
    P("L_xrole0:")
    first = []
    for g in range(G):
        first += [1 + g, 14 + g]
    first = [r for r in dict.fromkeys(first + [0, 13])]
    rest = []
    for g in range(G, 12):
        rest += [1 + g, 14 + g]
    rest += [13] if False else []
    rest = [r for r in dict.fromkeys(rest) if r not in first and r <= 25]
    assert sorted(first + rest) == list(range(26)), (first, rest)
    for r in first + rest:
        for i in xdma(r): P(i)
    n_first, n_rest = 2 * len(first), 2 * len(rest)
    P("L_role0_done:")
    stamp(P, args, 2)
    def bfr(s, g):
        return BFR + 4 * ((s & 1) * 3 + g)
    for s in range(13):
        pre = []
        fill = []
        if s >= 1:
            P("s_waitcnt lgkmcnt(0)")
        mf = []
        if s >= 1:
            for g in range(G):
                for t in range(6):
                    mf.append(mfma(ACC[g], t, s - 1, bfr(s - 1, g), s - 1 == 0))
        if s <= 11:
            head = mf[:2]; mf = mf[2:]
            for m in head: P(m)
            P(f"s_cmp_eq_u32 s{S_HALF}, 0")
            P(f"s_cbranch_scc0 L_xw{s}")
            nw = 12 if s <= 9 else (6 if s == 10 else 0)
            P(f"s_waitcnt vmcnt({nw})")
            P(f"s_branch L_wd{s}")
            P(f"L_xw{s}:")
            if s == 0:
                P(f"s_waitcnt vmcnt({n_rest})")
            elif s == 11:
                P("s_waitcnt vmcnt(0)")
            else:
                P("s_nop 0")
            P(f"L_wd{s}:")
            P("s_barrier")
            if s == 0:
                stamp(P, args, 3)
                for j in range(3):
                    for i in range(4):
                        P(f"v_lshlrev_b32 v{BIAS+8*j+2*i}, 16, v{OUTP+4*j+i}")
                        P(f"v_and_b32 v{BIAS+8*j+2*i+1}, 0xffff0000, v{OUTP+4*j+i}")
            if s + 3 <= 11:
                P(f"s_cbranch_scc0 L_nw{s}")
                for i in wdma(s + 3): P(i)
                P(f"L_nw{s}:")
            fill = [bread(bfr(s, g), g, s) for g in range(G)] + trreads(s)
            interleave(P, mf, fill, start=0, per=2)
        else:
            fill = [bread(BFR + 24 - 8 + 0, G, 0), bread(BFR + 24 - 8 + 4, G, 1)]
            interleave(P, mf, [], start=0)
    stamp(P, args, 4)
    def ring(s): return BFR + 4 * (s % 4)
    P("s_nop 7")
    P(bread(ring(0), G, 0))
    P(bread(ring(1), G, 1))
    for g in range(G - 1):
        for i in epilogue(ACC[g], sf): P(i)
    prev = ACC[G - 1]
    cur = ACC[0] if G - 1 != 0 else ACC[1]
    sets = [cur, prev]
    P(f"s_sub_u32 s{S_CNT}, s{S_NG}, {G}")
    P(f"v_add_u32 v{V_LDS}, {G*XROW}, v{V_LDS}")
    def group(accp, accq, goff):
        epi = epilogue(accq, sf)
        ei = 0
        for s in range(12):
            P(f"s_waitcnt lgkmcnt(1)")
            fill = []
            ns = s + 2
            if ns < 12:
                fill.append(bread(ring(ns), goff, ns))
            else:
                fill.append(bread(ring(ns), goff + 1, ns - 12))
            if s >= 1:
                take = 5 if s <= 3 else 1
                fill += epi[ei:ei + take]; ei += take
            mf = [mfma(accp, t, s, ring(s), s == 0) for t in range(6)]
            interleave(P, mf, fill, start=0, per=1 if len(fill) <= 6 else 2)
        assert ei >= len(epi)
    P("L_loop:")
    group(sets[0], sets[1], 0)
    P(f"s_sub_u32 s{S_CNT}, s{S_CNT}, 1")
    P(f"s_cmp_eq_u32 s{S_CNT}, 0")
    P("s_cbranch_scc1 L_fin0")
    group(sets[1], sets[0], 1)
    P(f"v_add_u32 v{V_LDS}, {2*XROW}, v{V_LDS}")
    P(f"s_sub_u32 s{S_CNT}, s{S_CNT}, 1")
    P(f"s_cmp_lg_u32 s{S_CNT}, 0")
    P("s_cbranch_scc1 L_loop")
    P("s_nop 7")
    for i in epilogue(sets[1], sf): P(i)
    P("s_branch L_done")
    P("L_fin0:")
    P("s_nop 7")
    for i in epilogue(sets[0], sf): P(i)
    P("L_done:")
    if args.stamps:
        stamp(P, args, 5)
        P("s_waitcnt vmcnt(0)")
        stamp(P, args, 6)
        P("s_waitcnt lgkmcnt(0)")
        P(f"s_lshl_b32 s46, s2, 2"); P(f"s_add_u32 s46, s46, s{S_WAVE}"); P("s_lshl_b32 s46, s46, 6")
        P(f"v_mov_b32 v{V_T}, s46")
        P(f"v_cmp_eq_u32 vcc, 0, v{V_LANE}")
        P("s_and_saveexec_b64 s[48:49], vcc")
        for i in range(8 if args.stamps == 2 else 7):
            P(f"v_mov_b32 v{V_T+2}, s{S_STAMP+2*i}"); P(f"v_mov_b32 v{V_T+3}, s{S_STAMP+2*i+1}")
            P(f"global_store_dwordx2 v{V_T}, v[{V_T+2}:{V_T+3}], s[58:59] offset:{8*i}")
            P("s_nop 1")
    P("L_end:")
    P("s_endpgm")
    ftr = f"""
.section .rodata,"a"
.p2align 6
.amdhsa_kernel {NAME}
  .amdhsa_next_free_vgpr 512
  .amdhsa_next_free_sgpr 102
  .amdhsa_accum_offset 256
  .amdhsa_group_segment_fixed_size 0
  .amdhsa_kernarg_size 48
  .amdhsa_user_sgpr_count 2
  .amdhsa_user_sgpr_kernarg_segment_ptr 1
  .amdhsa_system_sgpr_workgroup_id_x 1
.end_amdhsa_kernel
"""
    P.L = [x for x in P.L if x is not None]
    return hdr + P.text() + ftr

if __name__ == "__main__":
    ap = argparse.ArgumentParser()
    ap.add_argument("-o", default="standalone__transposed_strided__vision.s")
    ap.add_argument("--G", type=int, default=2)
    ap.add_argument("--store-flags", default="sc0 sc1")
    ap.add_argument("--stamps", type=int, default=0)
    ap.add_argument("--warm", type=int, default=1)
    ap.add_argument("--delay", type=int, default=0)
    args = ap.parse_args()
    open(args.o, "w").write(gen(args))
```

```python
import sys, argparse

NAME = "standalone__transposed_strided__vision_kernel"

XROW = 4096
NXROWS = 26
WB = NXROWS * XROW
WSLOT = 6160
NSLOT = 4
WPH = WSLOT * NSLOT
LDS_BYTES = WB + 2 * WPH

def wreg(s, t):
    f = s * 6 + t
    if f < 64:
        return "a", 4 * f
    return "v", 224 + 4 * (f - 64)
def rng(kind, base, n):
    return f"{kind}[{base}:{base+n-1}]"
ACC = [0, 24, 48]
BIAS = 72
BFR = 96
OUTP = 120
V_LDS = 132
V_OUT = 133
V_TR = 134
V_WA, V_WB, V_WA1, V_WB1, V_WA2 = 135, 136, 137, 138, 139
V_X0, V_X1 = 140, 141
V_T = 142
V_LANE = 160

S_X, S_W, S_O, S_B = 8, 12, 16, 20
S_WAVE, S_PX, S_HALF, S_PY, S_STRIP, S_R0, S_NG, S_OUT, S_WG, S_T, S_WL, S_XR = 28, 29, 30, 31, 32, 33, 34, 35, 36, 37, 38, 39
S_T2, S_CNT, S_T3 = 40, 41, 42
S_XL = 43
S_STAMP = 60

class Prog:
    def __init__(self):
        self.L = []
    def __call__(self, s):
        self.L.append(s)
    def text(self):
        return "\n".join(("" if l.endswith(":") else "    ") + l for l in self.L) + "\n"

def mfma(acc, t, s, bf, first):
    k, b = wreg(s, t)
    d = rng("v", acc + 4 * t, 4)
    c = rng("v", BIAS + 4 * t, 4) if first else d
    return f"v_mfma_f32_16x16x32_bf16 {d}, {rng(k, b, 4)}, {rng('v', bf, 4)}, {c}"

def bread(bf, g, s):
    tap, ks = divmod(s, 3)
    a, b = tap >> 1, tap & 1
    off = g * XROW + (1 - a) * XROW + (1 - b) * 224 + ks * 64
    return f"ds_read_b128 {rng('v', bf, 4)}, v{V_LDS} offset:{off}"

def trreads(s):
    L = []
    slot = s % NSLOT
    for t in range(6):
        j, tb = t >> 1, t & 1
        k, b = wreg(s, t)
        for h in range(2):
            off = slot * WSLOT + h * 768 + j * 64 + tb * 8
            L.append(f"ds_read_b64_tr_b16 {rng(k, b + 2 * h, 2)}, v{V_TR} offset:{off}")
    return L

def wdma(s):
    slot = s % NSLOT
    tap, ks = divmod(s, 3)
    a, b = tap >> 1, tap & 1
    goff = (2 * a * 4 + 2 * b) * 18432 + ks * 6144
    L = []
    L.append(f"s_add_u32 m0, s{S_WL}, {slot * WSLOT}")
    L.append(f"s_add_u32 s{S_T}, s{S_WG}, {goff}")
    L.append(f"buffer_load_dwordx4 v{V_WA}, s[{S_W}:{S_W+3}], s{S_T} offen lds")
    L.append(f"buffer_load_dwordx4 v{V_WB}, s[{S_W}:{S_W+3}], s{S_T} offen offset:1024 lds")
    L.append(f"buffer_load_dwordx4 v{V_WA1}, s[{S_W}:{S_W+3}], s{S_T} offen offset:2048 lds")
    L.append(f"s_add_u32 m0, s{S_WL}, {slot * WSLOT + 3080}")
    L.append("s_nop 0")
    L.append(f"buffer_load_dwordx4 v{V_WA1}, s[{S_W}:{S_W+3}], s{S_T} offen lds")
    L.append(f"buffer_load_dwordx4 v{V_WB1}, s[{S_W}:{S_W+3}], s{S_T} offen offset:1024 lds")
    L.append(f"buffer_load_dwordx4 v{V_WA2}, s[{S_W}:{S_W+3}], s{S_T} offen offset:2048 lds")
    return L

def xdma(rho):
    L = []
    L.append(f"s_add_u32 s{S_T2}, s{S_XR}, {rho}")
    if rho in (0, 24, 25):
        L.append(f"s_cmp_lt_u32 s{S_T2}, 224")
        L.append(f"s_cselect_b32 s{S_X+2}, s{S_T3}, 0")
    L.append(f"s_mul_i32 s{S_T2}, s{S_T2}, 43008")
    L.append(f"s_add_u32 m0, s{S_XL}, {rho * XROW}")
    L.append("s_nop 0")
    L.append(f"buffer_load_dwordx4 v{V_X0}, s[{S_X}:{S_X+3}], s{S_T2} offen lds")
    L.append(f"s_add_u32 m0, s{S_XL}, {rho * XROW + 1024}")
    L.append("s_nop 0")
    L.append(f"buffer_load_dwordx4 v{V_X1}, s[{S_X}:{S_X+3}], s{S_T2} offen lds")
    if rho in (0, 24, 25):
        L.append(f"s_mov_b32 s{S_X+2}, s{S_T3}")
    return L

def epilogue(acc, sf):
    L = []
    for j in range(3):
        o = OUTP + 4 * j
        t0, t1 = acc + 8 * j, acc + 8 * j + 4
        L.append(f"v_cvt_pk_bf16_f32 v{o}, v{t0}, v{t0+1}")
        L.append(f"v_cvt_pk_bf16_f32 v{o+1}, v{t0+2}, v{t0+3}")
        L.append(f"v_cvt_pk_bf16_f32 v{o+2}, v{t1}, v{t1+1}")
        L.append(f"v_cvt_pk_bf16_f32 v{o+3}, v{t1+2}, v{t1+3}")
        L.append(f"buffer_store_dwordx4 {rng('v', o, 4)}, v{V_OUT}, s[{S_O}:{S_O+3}], s{S_OUT} offen offset:{64*j} {sf}".rstrip())
    L.append(f"s_add_u32 s{S_OUT}, s{S_OUT}, {2*448*192}")
    return L

def interleave(P, mfmas, fillers, start=0, per=2):
    fi = 0
    for i, m in enumerate(mfmas):
        P(m)
        if i >= start:
            n = 0
            while fi < len(fillers) and n < per:
                P(fillers[fi]); fi += 1; n += 1
    while fi < len(fillers):
        P(fillers[fi]); fi += 1

def stamp(P, args, idx):
    if args.stamps in (1, 3):
        P(f"s_memrealtime s[{S_STAMP+2*idx}:{S_STAMP+2*idx+1}]")
    elif args.stamps == 2:
        if idx == 0:
            P(f"s_memrealtime s[{S_STAMP}:{S_STAMP+1}]")
            P(f"s_memtime s[{S_STAMP+14}:{S_STAMP+15}]")
        else:
            P(f"s_memtime s[{S_STAMP+2*idx}:{S_STAMP+2*idx+1}]")

def gen(args):
    G = args.G
    sf = args.store_flags
    P = Prog()
    hdr = f"""; Transposed conv 4x4 stride 2, x(1,224,224,96) bf16 -> out(1,448,448,96) bf16, gfx950.
; @launch grid=(256,1,1) block=(256,1,1) lds={LDS_BYTES}
.amdgcn_target "amdgcn-amd-amdhsa--gfx950"
.text
.globl {NAME}
.p2align 8
.type {NAME},@function
{NAME}:
"""
    stamp(P, args, 0)
    if args.delay:
        P("s_memrealtime s[50:51]")
        P("s_waitcnt lgkmcnt(0)")
        P(f"s_add_u32 s52, s50, {args.delay}")
        P("L_spin:")
        P("s_memrealtime s[50:51]")
        P("s_waitcnt lgkmcnt(0)")
        P("s_sub_u32 s53, s52, s50")
        P("s_cmp_gt_i32 s53, 0")
        P("s_cbranch_scc1 L_spin")
    P("s_load_dwordx4 s[4:7], s[0:1], 0")
    P("s_load_dwordx4 s[24:27], s[0:1], 16")
    if args.stamps:
        P(f"s_load_dwordx2 s[58:59], s[0:1], {32 if args.stamps == 3 else 40}")
    P("s_and_b32 s3, s2, 7")
    P("s_lshr_b32 s44, s2, 3")
    P(f"s_and_b32 s{S_PY}, s44, 1")
    P("s_lshr_b32 s45, s44, 1")
    P("s_lshl_b32 s3, s3, 4")
    P("s_add_u32 s3, s3, s45")
    P("s_cmp_ge_u32 s2, 256")
    P("s_cbranch_scc1 L_end")
    P("s_cmp_ge_u32 s3, 126")
    P("s_cbranch_scc1 L_end")
    P(f"s_mul_i32 s{S_STRIP}, s3, 7282")
    P(f"s_lshr_b32 s{S_STRIP}, s{S_STRIP}, 16")
    P(f"s_mul_i32 s45, s{S_STRIP}, 9")
    P("s_sub_u32 s45, s3, s45")
    P(f"s_mul_i32 s{S_R0}, s45, 25")
    P(f"v_lshrrev_b32 v{V_T}, 6, v0")
    P(f"v_and_b32 v{V_LANE}, 63, v0")
    P("s_nop 0")
    P(f"v_readfirstlane_b32 s{S_WAVE}, v{V_T}")
    P("s_nop 3")
    P(f"s_and_b32 s{S_PX}, s{S_WAVE}, 1")
    P(f"s_lshr_b32 s{S_HALF}, s{S_WAVE}, 1")
    P("s_cmp_lt_u32 s45, 8")
    P(f"s_cselect_b32 s{S_NG}, 12, 11")
    P(f"s_cmp_eq_u32 s{S_HALF}, 0")
    P(f"s_cselect_b32 s{S_NG}, 13, s{S_NG}")
    l = V_LANE
    q, p = V_T, V_T + 1
    P(f"v_lshrrev_b32 v{q}, 4, v{l}")
    P(f"v_and_b32 v{p}, 15, v{l}")
    P(f"v_add_u32 v{V_T+2}, s{S_PX}, v{p}")
    P(f"v_mul_u32_u24 v{V_T+2}, 224, v{V_T+2}")
    P(f"v_lshl_add_u32 v{V_T+2}, v{q}, 4, v{V_T+2}")
    P(f"s_mul_i32 s46, s{S_HALF}, {13*XROW}")
    P(f"v_add_u32 v{V_LDS}, s46, v{V_T+2}")
    P(f"v_mul_u32_u24 v{V_T+2}, 384, v{p}")
    P(f"v_lshl_add_u32 v{V_T+2}, v{q}, 4, v{V_T+2}")
    P(f"s_mul_i32 s46, s{S_PX}, 192")
    P(f"v_add_u32 v{V_OUT}, s46, v{V_T+2}")
    P(f"s_mul_i32 s46, s{S_HALF}, 13")
    P(f"s_add_u32 s46, s46, s{S_R0}")
    P("s_lshl_b32 s46, s46, 1")
    P(f"s_add_u32 s46, s46, s{S_PY}")
    P("s_mul_i32 s46, s46, 448")
    P(f"s_lshl_b32 s47, s{S_STRIP}, 5")
    P("s_add_u32 s46, s46, s47")
    P(f"s_mul_i32 s{S_OUT}, s46, 192")
    P(f"v_and_b32 v{V_T+2}, 1, v{q}")
    P(f"v_mul_u32_u24 v{V_T+2}, 3080, v{V_T+2}")
    P(f"v_lshrrev_b32 v{V_T+3}, 1, v{q}")
    P(f"v_mul_u32_u24 v{V_T+3}, 1536, v{V_T+3}")
    P(f"v_add_u32 v{V_T+2}, v{V_T+2}, v{V_T+3}")
    P(f"v_bfe_u32 v{V_T+3}, v{l}, 2, 2")
    P(f"v_mul_u32_u24 v{V_T+3}, 192, v{V_T+3}")
    P(f"v_add_u32 v{V_T+2}, v{V_T+2}, v{V_T+3}")
    P(f"v_and_b32 v{V_T+3}, 3, v{l}")
    P(f"v_lshl_add_u32 v{V_T+2}, v{V_T+3}, 4, v{V_T+2}")
    P(f"s_mul_i32 s{S_WL}, s{S_PX}, {WPH}")
    P(f"s_add_u32 s{S_WL}, s{S_WL}, {WB}")
    P(f"v_add_u32 v{V_TR}, s{S_WL}, v{V_T+2}")
    P(f"v_lshlrev_b32 v{V_WA}, 4, v{l}")
    P(f"v_lshrrev_b32 v{V_T+2}, 5, v{l}")
    P(f"v_mul_u32_u24 v{V_T+2}, 1536, v{V_T+2}")
    P(f"v_add_u32 v{V_WB}, v{V_WA}, v{V_T+2}")
    P(f"v_add_u32 v{V_WA1}, 1536, v{V_WA}")
    P(f"v_add_u32 v{V_WB1}, 1536, v{V_WB}")
    P(f"v_add_u32 v{V_WA2}, 3072, v{V_WA}")
    P(f"s_sub_u32 s46, 1, s{S_PY}")
    P("s_lshl_b32 s46, s46, 2")
    P(f"s_sub_u32 s47, 1, s{S_PX}")
    P("s_add_u32 s46, s46, s47")
    P(f"s_mul_i32 s{S_WG}, s46, 18432")
    P(f"s_lshl_b32 s46, s{S_PX}, 7")
    P(f"s_lshl_b32 s{S_XL}, s{S_PX}, 11")
    P(f"s_lshl_b32 s47, s{S_STRIP}, 4")
    P("s_sub_u32 s47, s47, 1")
    for i, vx in enumerate((V_X0, V_X1)):
        t = V_T + 2
        P(f"v_add_u32 v{t}, s46, v{l}")
        if i:
            P(f"v_add_u32 v{t}, 64, v{t}")
        P(f"v_mul_u32_u24 v{t+1}, 4682, v{t}")
        P(f"v_lshrrev_b32 v{t+1}, 16, v{t+1}")
        P(f"v_mul_u32_u24 v{t+2}, 14, v{t+1}")
        P(f"v_sub_u32 v{t+2}, v{t}, v{t+2}")
        P(f"v_add_u32 v{t+3}, s47, v{t+1}")
        P(f"v_mul_lo_u32 v{t+4}, v{t+3}, s48") if False else None
        P(f"v_mul_i32_i24 v{t+4}, 192, v{t+3}")
        P(f"v_lshl_add_u32 v{t+4}, v{t+2}, 4, v{t+4}")
        P(f"v_cmp_gt_u32 vcc, 12, v{t+2}")
        P(f"v_cmp_gt_u32 s[48:49], 18, v{t+1}") if False else None
        P(f"v_mov_b32 v{t+5}, 0x80000000")
        P("s_nop 0")
        P(f"v_cndmask_b32 v{t+4}, v{t+5}, v{t+4}, vcc")
        P(f"v_cmp_gt_u32 vcc, 18, v{t+1}")
        P("s_nop 1")
        P(f"v_cndmask_b32 v{t+4}, v{t+5}, v{t+4}, vcc")
        P(f"v_cmp_gt_u32 vcc, 224, v{t+3}")
        P("s_nop 1")
        P(f"v_cndmask_b32 v{vx}, v{t+5}, v{t+4}, vcc")
    P(f"s_add_u32 s{S_XR}, s{S_R0}, s{S_PY}")
    P(f"s_sub_u32 s{S_XR}, s{S_XR}, 1")
    P(f"s_mov_b32 s{S_T3}, 9633792")
    P(f"v_lshlrev_b32 v{V_T+2}, 4, v{q}")
    P(f"s_lshl_b32 s46, s44, 2")
    P(f"s_add_u32 s46, s46, s{S_WAVE}")
    P("s_mul_i32 s46, s46, 2304")
    P(f"v_lshlrev_b32 v{V_T+3}, 7, v{l}")
    P(f"v_add_u32 v{V_T+3}, s46, v{V_T+3}")
    P(f"v_cmp_gt_u32 vcc, 18, v{l}")
    P(f"v_mov_b32 v{V_T+4}, 0x80000000")
    P("s_nop 0")
    P(f"v_cndmask_b32 v{V_T+3}, v{V_T+4}, v{V_T+3}, vcc")
    P("s_waitcnt lgkmcnt(0)")
    stamp(P, args, 1)
    for (r, lo, sz) in ((S_X, 4, 9633792), (S_W, 6, 294912), (S_B, 24, 192), (S_O, 26, 38535168)):
        P(f"s_mov_b32 s{r}, s{lo}")
        P(f"s_mov_b32 s{r+1}, s{lo+1}")
        P(f"s_mov_b32 s{r+2}, {sz}")
        P(f"s_mov_b32 s{r+3}, 0x20000")
    if args.warm:
        P(f"buffer_load_dword v{V_T+6}, v{V_T+3}, s[{S_W}:{S_W+3}], 0 offen")
    for j in range(3):
        P(f"buffer_load_dwordx4 {rng('v', OUTP+4*j, 4)}, v{V_T+2}, s[{S_B}:{S_B+3}], 0 offen offset:{64*j}")
    P(f"s_cmp_eq_u32 s{S_HALF}, 0")
    P("s_cbranch_scc0 L_xrole0")
    for s in range(3):
        for i in wdma(s): P(i)
    P("s_branch L_role0_done")
    P("L_xrole0:")
    first = []
    for g in range(G):
        first += [1 + g, 14 + g]
    first = [r for r in dict.fromkeys(first + [0, 13])]
    rest = []
    for g in range(G, 12):
        rest += [1 + g, 14 + g]
    rest += [13] if False else []
    rest = [r for r in dict.fromkeys(rest) if r not in first and r <= 25]
    assert sorted(first + rest) == list(range(26)), (first, rest)
    for r in first + rest:
        for i in xdma(r): P(i)
    n_first, n_rest = 2 * len(first), 2 * len(rest)
    P("L_role0_done:")
    stamp(P, args, 2)
    def bfr(s, g):
        return BFR + 4 * ((s & 1) * 3 + g)
    for s in range(13):
        pre = []
        fill = []
        if s >= 1:
            P("s_waitcnt lgkmcnt(0)")
        mf = []
        if s >= 1:
            for g in range(G):
                for t in range(6):
                    mf.append(mfma(ACC[g], t, s - 1, bfr(s - 1, g), s - 1 == 0))
        if s <= 11:
            head = mf[:2]; mf = mf[2:]
            for m in head: P(m)
            P(f"s_cmp_eq_u32 s{S_HALF}, 0")
            P(f"s_cbranch_scc0 L_xw{s}")
            nw = 12 if s <= 9 else (6 if s == 10 else 0)
            P(f"s_waitcnt vmcnt({nw})")
            P(f"s_branch L_wd{s}")
            P(f"L_xw{s}:")
            if s == 0:
                P(f"s_waitcnt vmcnt({n_rest})")
            elif s == 11:
                P("s_waitcnt vmcnt(0)")
            else:
                P("s_nop 0")
            P(f"L_wd{s}:")
            P("s_barrier")
            if s == 0:
                stamp(P, args, 3)
                for j in range(3):
                    for i in range(4):
                        P(f"v_lshlrev_b32 v{BIAS+8*j+2*i}, 16, v{OUTP+4*j+i}")
                        P(f"v_and_b32 v{BIAS+8*j+2*i+1}, 0xffff0000, v{OUTP+4*j+i}")
            if s + 3 <= 11:
                P(f"s_cbranch_scc0 L_nw{s}")
                for i in wdma(s + 3): P(i)
                P(f"L_nw{s}:")
            fill = [bread(bfr(s, g), g, s) for g in range(G)] + trreads(s)
            interleave(P, mf, fill, start=0, per=2)
        else:
            fill = [bread(BFR + 24 - 8 + 0, G, 0), bread(BFR + 24 - 8 + 4, G, 1)]
            interleave(P, mf, [], start=0)
    stamp(P, args, 4)
    def ring(s): return BFR + 4 * (s % 4)
    P("s_nop 7")
    P(bread(ring(0), G, 0))
    P(bread(ring(1), G, 1))
    for g in range(G - 1):
        for i in epilogue(ACC[g], sf): P(i)
    prev = ACC[G - 1]
    cur = ACC[0] if G - 1 != 0 else ACC[1]
    sets = [cur, prev]
    P(f"s_sub_u32 s{S_CNT}, s{S_NG}, {G}")
    P(f"v_add_u32 v{V_LDS}, {G*XROW}, v{V_LDS}")
    def group(accp, accq, goff):
        epi = epilogue(accq, sf)
        ei = 0
        for s in range(12):
            P(f"s_waitcnt lgkmcnt(1)")
            fill = []
            ns = s + 2
            if ns < 12:
                fill.append(bread(ring(ns), goff, ns))
            else:
                fill.append(bread(ring(ns), goff + 1, ns - 12))
            if s >= 1:
                take = 5 if s <= 3 else 1
                fill += epi[ei:ei + take]; ei += take
            mf = [mfma(accp, t, s, ring(s), s == 0) for t in range(6)]
            interleave(P, mf, fill, start=0, per=1 if len(fill) <= 6 else 2)
        assert ei >= len(epi)
    P("L_loop:")
    group(sets[0], sets[1], 0)
    P(f"s_sub_u32 s{S_CNT}, s{S_CNT}, 1")
    P(f"s_cmp_eq_u32 s{S_CNT}, 0")
    P("s_cbranch_scc1 L_fin0")
    group(sets[1], sets[0], 1)
    P(f"v_add_u32 v{V_LDS}, {2*XROW}, v{V_LDS}")
    P(f"s_sub_u32 s{S_CNT}, s{S_CNT}, 1")
    P(f"s_cmp_lg_u32 s{S_CNT}, 0")
    P("s_cbranch_scc1 L_loop")
    P("s_nop 7")
    for i in epilogue(sets[1], sf): P(i)
    P("s_branch L_done")
    P("L_fin0:")
    P("s_nop 7")
    for i in epilogue(sets[0], sf): P(i)
    P("L_done:")
    if args.stamps == 3:
        stamp(P, args, 5)
        P("s_waitcnt vmcnt(0)")
        stamp(P, args, 6)
        P("s_waitcnt lgkmcnt(0)")
        P(f"s_lshl_b32 s46, s2, 2"); P(f"s_add_u32 s46, s46, s{S_WAVE}")
        P("s_mov_b32 s47, 0")
        P("s_cmp_eq_u32 s46, 0")
        P("s_cbranch_scc1 L_wr")
        P("s_mov_b32 s47, 32")
        P("s_cmp_eq_u32 s46, 406")
        P("s_cbranch_scc0 L_end")
        P("L_wr:")
        P(f"v_mov_b32 v{V_T}, s47")
        P(f"v_cmp_eq_u32 vcc, 0, v{V_LANE}")
        P("s_and_saveexec_b64 s[48:49], vcc")
        for i in range(7):
            if i == 0:
                P(f"v_mov_b32 v{V_T+2}, s{S_STAMP}")
            else:
                P(f"s_sub_u32 s46, s{S_STAMP+2*i}, s{S_STAMP}")
                P(f"v_mov_b32 v{V_T+2}, s46")
            P(f"global_store_dword v{V_T}, v{V_T+2}, s[58:59] offset:{4*i}")
            P("s_nop 1")
    elif args.stamps:
        stamp(P, args, 5)
        P("s_waitcnt vmcnt(0)")
        stamp(P, args, 6)
        P("s_waitcnt lgkmcnt(0)")
        P(f"s_lshl_b32 s46, s2, 2"); P(f"s_add_u32 s46, s46, s{S_WAVE}"); P("s_lshl_b32 s46, s46, 6")
        P(f"v_mov_b32 v{V_T}, s46")
        P(f"v_cmp_eq_u32 vcc, 0, v{V_LANE}")
        P("s_and_saveexec_b64 s[48:49], vcc")
        for i in range(8 if args.stamps == 2 else 7):
            P(f"v_mov_b32 v{V_T+2}, s{S_STAMP+2*i}"); P(f"v_mov_b32 v{V_T+3}, s{S_STAMP+2*i+1}")
            P(f"global_store_dwordx2 v{V_T}, v[{V_T+2}:{V_T+3}], s[58:59] offset:{8*i}")
            P("s_nop 1")
    P("L_end:")
    P("s_endpgm")
    ftr = f"""
.section .rodata,"a"
.p2align 6
.amdhsa_kernel {NAME}
  .amdhsa_next_free_vgpr 512
  .amdhsa_next_free_sgpr 102
  .amdhsa_accum_offset 256
  .amdhsa_group_segment_fixed_size 0
  .amdhsa_kernarg_size 48
  .amdhsa_user_sgpr_count 2
  .amdhsa_user_sgpr_kernarg_segment_ptr 1
  .amdhsa_system_sgpr_workgroup_id_x 1
.end_amdhsa_kernel
"""
    P.L = [x for x in P.L if x is not None]
    return hdr + P.text() + ftr

if __name__ == "__main__":
    ap = argparse.ArgumentParser()
    ap.add_argument("-o", default="standalone__transposed_strided__vision.s")
    ap.add_argument("--G", type=int, default=2)
    ap.add_argument("--store-flags", default="sc0 sc1")
    ap.add_argument("--stamps", type=int, default=0)
    ap.add_argument("--warm", type=int, default=1)
    ap.add_argument("--delay", type=int, default=0)
    args = ap.parse_args()
    open(args.o, "w").write(gen(args))
```

```python
import sys, argparse

NAME = "standalone__transposed_strided__vision_kernel"

XROW = 4096
NXROWS = 15
WB = NXROWS * XROW
WSLOT = 6160
NSLOT = 4
WPH = WSLOT * NSLOT
LDS_BYTES = WB + 4 * WPH

def wreg(s, t):
    f = s * 6 + t
    if f < 64:
        return "a", 4 * f
    return "v", 224 + 4 * (f - 64)
def rng(kind, base, n):
    return f"{kind}[{base}:{base+n-1}]"
ACC = [0, 24, 48, 72, 96]
BIAS = 120
BFR = 144
OUTP = 192
V_LDS, V_OUT, V_TR = 204, 205, 206
V_WA, V_WB, V_WA1, V_WB1, V_WA2 = 207, 208, 209, 210, 211
V_X0 = 212
V_BOFF = 213
V_LANE = 214
V_T = 96
V_D = 216

S_X, S_W, S_O, S_B = 8, 12, 16, 20
S_WAVE, S_PX, S_PY, S_STRIP, S_R0, S_NG, S_OUT, S_WG, S_T, S_WL, S_XR = 28, 29, 31, 32, 33, 34, 35, 36, 37, 38, 39
S_T2, S_CNT, S_XSZ, S_XL, S_XG = 40, 41, 42, 43, 44
S_STAMP = 60

class Prog:
    def __init__(self):
        self.L = []
    def __call__(self, s):
        if s is not None:
            self.L.append(s)
    def text(self):
        return "\n".join(("" if l.endswith(":") else "    ") + l for l in self.L) + "\n"

class VM:
    def __init__(self, ops=None):
        self.ops = list(ops) if ops else []
    def add(self, tag):
        self.ops.append(tag)
    def wait(self, tags):
        idx = [i for i, t in enumerate(self.ops) if t in tags]
        if not idx: return None
        n = len(self.ops) - 1 - max(idx)
        assert n <= 63, n
        return f"s_waitcnt vmcnt({n})"

C_S, C_V, C_DS, C_DMA, C_ST = 4, 4, 8, 8, 8
def S(x): return (x, None, C_S)
def V(x): return (x, None, C_V)
def D(x): return (x, None, C_DS)
EXP = ""; XFL = "nt"; WFL = ""

def mfma(acc, t, s, bf, first):
    k, b = wreg(s, t)
    d = rng("v", acc + 4 * t, 4)
    c = rng("v", BIAS + 4 * t, 4) if first else d
    return f"v_mfma_f32_16x16x32_bf16 {d}, {rng(k, b, 4)}, {rng('v', bf, 4)}, {c}"

def bread(bf, row, b, ks):
    off = row * XROW + (1 - b) * 224 + ks * 64
    assert off < 65536
    return D(f"ds_read_b128 {rng('v', bf, 4)}, v{V_LDS} offset:{off}")

def rowreads(buf, row):
    return [bread(buf + 4 * (b * 3 + ks), row, b, ks) for b in range(2) for ks in range(3)]

def trreads(s):
    L = []
    slot = s % NSLOT
    for t in range(6):
        j, tb = t >> 1, t & 1
        k, b = wreg(s, t)
        for h in range(2):
            off = slot * WSLOT + h * 768 + j * 64 + tb * 8
            L.append(D(f"ds_read_b64_tr_b16 {rng(k, b + 2 * h, 2)}, v{V_TR} offset:{off}"))
    return L

def wdma(s):
    slot = s % NSLOT
    tap, ks = divmod(s, 3)
    a, b = tap >> 1, tap & 1
    goff = (2 * a * 4 + 2 * b) * 18432 + ks * 6144
    tag = f"w{s}"
    def ld(v, off):
        o = f" offset:{off}" if off else ""
        return (f"buffer_load_dwordx4 v{v}, s[{S_W}:{S_W+3}], s{S_T} offen{o} {WFL} lds".replace("  ", " "), tag, C_DMA)
    return [
        S(f"s_add_u32 m0, s{S_WL}, {slot * WSLOT}"),
        S(f"s_add_u32 s{S_T}, s{S_WG}, {goff}"),
        ld(V_WA, 0), ld(V_WB, 1024), ld(V_WA1, 2048),
        S(f"s_add_u32 m0, s{S_WL}, {slot * WSLOT + 3080}"),
        S("s_nop 0"),
        ld(V_WA1, 0), ld(V_WB1, 1024), ld(V_WA2, 2048),
    ]

def xdma(rho):
    tag = f"x{rho}"
    L = []
    chk = rho in (0, 13, 14)
    if chk:
        L.append(S(f"s_add_u32 s{S_T2}, s{S_XR}, {rho}"))
        L.append(S(f"s_cmp_lt_u32 s{S_T2}, 224"))
        L.append(S(f"s_cselect_b32 s{S_X+2}, s{S_XSZ}, 0"))
    L.append(S(f"s_add_u32 m0, s{S_XL}, {rho * XROW}"))
    L.append(S(f"s_add_u32 s{S_T2}, s{S_XG}, {rho * 43008}"))
    L.append((f"buffer_load_dwordx4 v{V_X0}, s[{S_X}:{S_X+3}], s{S_T2} offen {XFL} lds".replace("  ", " "), tag, C_DMA))
    if chk:
        L.append(S(f"s_mov_b32 s{S_X+2}, s{S_XSZ}"))
    return L

def cvts(acc, j):
    o = OUTP + 4 * j
    t0, t1 = acc + 8 * j, acc + 8 * j + 4
    return [V(f"v_cvt_pk_bf16_f32 v{o}, v{t0}, v{t0+1}"), V(f"v_cvt_pk_bf16_f32 v{o+1}, v{t0+2}, v{t0+3}"),
            V(f"v_cvt_pk_bf16_f32 v{o+2}, v{t1}, v{t1+1}"), V(f"v_cvt_pk_bf16_f32 v{o+3}, v{t1+2}, v{t1+3}")]
def store(j, sf):
    o = OUTP + 4 * j
    return (f"buffer_store_dwordx4 {rng('v', o, 4)}, v{V_OUT}, s[{S_O}:{S_O+3}], s{S_OUT} offen offset:{64*j} {sf}".rstrip(), "st", C_ST)
def outadv():
    return S(f"s_add_u32 s{S_OUT}, s{S_OUT}, {2*448*192}")
def epilogue(acc, sf):
    L = []
    for j in range(3):
        L += cvts(acc, j) + [store(j, sf)]
    L.append(outadv())
    if "nost" in EXP: L = [x for x in L if x[1] != "st"]
    return L

def emit(P, vm, item):
    txt, tag = item[0], item[1]
    P(txt)
    if tag is not None and vm is not None:
        vm.add(tag)

def pack(fillers, budget=8):
    out = []; cur = []; c = 0
    for it in fillers:
        if cur and c + it[2] > budget:
            out.append(cur); cur = []; c = 0
        cur.append(it); c += it[2]
    if cur: out.append(cur)
    return out

def interleave(P, vm, mfmas, fillers, start=0, end=None, spread=True):
    n = len(mfmas)
    if end is None: end = n
    bundles = pack(fillers)
    gaps = end - start
    if len(bundles) > gaps:
        nb = []
        per = len(bundles) / gaps
        for g in range(gaps):
            lo, hi = int(round(g * per)), int(round((g + 1) * per))
            nb.append([x for b in bundles[lo:hi] for x in b])
        bundles = nb
        pos = list(range(start, end))
    elif spread:
        pos = [start + (i * gaps) // len(bundles) for i in range(len(bundles))] if bundles else []
    else:
        pos = list(range(start, start + len(bundles)))
    at = dict(zip(pos, bundles))
    for i, m in enumerate(mfmas):
        P(m)
        for it in at.get(i, []):
            emit(P, vm, it)

def placed(P, vm, mfmas, at):
    assert max(at.keys(), default=0) < len(mfmas), (max(at.keys()), len(mfmas))
    for i, m in enumerate(mfmas):
        P(m)
        for it in at.get(i, []):
            emit(P, vm, it)

def mix(a, b):
    out = []; i = j = 0
    while i < len(a) or j < len(b):
        if j >= len(b) or (i < len(a) and i * len(b) <= j * len(a)):
            out.append(a[i]); i += 1
        else:
            out.append(b[j]); j += 1
    return out

COARSE = {0: 0, 1: 1, 2: 2, 3: 3, 15: 4, 17: 5, 18: 6}
def stamp(P, args, idx):
    if args.stamps in (1, 3):
        if idx in COARSE: i = COARSE[idx]; P(f"s_memrealtime s[{S_STAMP+2*i}:{S_STAMP+2*i+1}]")
    elif args.stamps == 4:
        P(f"s_memtime s[{S_STAMP+2*idx}:{S_STAMP+2*idx+1}]")
    elif args.stamps == 5:
        P(f"s_memrealtime s[{S_STAMP+2*idx}:{S_STAMP+2*idx+1}]")

def gen(args):
    G = args.G
    sf = args.store_flags
    global EXP, XFL, WFL
    EXP = args.exp; XFL = args.xflags; WFL = args.wflags
    P = Prog()
    hdr = f"""; Transposed conv 4x4 stride 2, x(1,224,224,96) bf16 -> out(1,448,448,96) bf16, gfx950.
; One workgroup = 16-pixel-wide strip x 12/13 input rows; wave = output phase (py, px).
; Each wave keeps the 4 taps of its phase (384 x 96 bf16) in 288 registers and streams pixel rows from LDS.
; @launch grid=(256,1,1) block=(256,1,1) lds={LDS_BYTES}
.amdgcn_target "amdgcn-amd-amdhsa--gfx950"
.text
.globl {NAME}
.p2align 8
.type {NAME},@function
{NAME}:
"""
    stamp(P, args, 0)
    P("s_load_dwordx4 s[4:7], s[0:1], 0")
    P("s_load_dwordx4 s[24:27], s[0:1], 16")
    if args.stamps:
        P(f"s_load_dwordx2 s[58:59], s[0:1], {32 if args.stamps == 3 else 40}")
    P("s_and_b32 s3, s2, 7")
    P("s_lshr_b32 s45, s2, 3")
    P("s_and_b32 s46, s3, 1")
    P("s_sub_u32 s46, 32, s46")
    P("s_mul_i32 s3, s3, 63")
    P("s_add_u32 s3, s3, 1")
    P("s_lshr_b32 s3, s3, 1")
    P("s_add_u32 s3, s3, s45")
    P("s_cmp_ge_u32 s45, s46")
    P("s_cbranch_scc1 L_end")
    l = V_LANE
    P(f"v_lshrrev_b32 v{V_T}, 6, v0")
    P(f"v_and_b32 v{l}, 63, v0")
    P(f"s_mul_i32 s{S_STRIP}, s3, 3641")
    P(f"v_readfirstlane_b32 s{S_WAVE}, v{V_T}")
    P(f"s_lshr_b32 s{S_STRIP}, s{S_STRIP}, 16")
    P(f"s_mul_i32 s46, s{S_STRIP}, 18")
    P("s_sub_u32 s46, s3, s46")
    P(f"s_mul_i32 s{S_R0}, s46, 12")
    P("s_min_u32 s47, s46, 8")
    P(f"s_add_u32 s{S_R0}, s{S_R0}, s47")
    P(f"s_and_b32 s{S_PX}, s{S_WAVE}, 1")
    P(f"s_lshr_b32 s{S_PY}, s{S_WAVE}, 1")
    P("s_cmp_lt_u32 s46, 8")
    P(f"s_cselect_b32 s{S_NG}, 13, 12")
    P(f"s_lshl_b32 s47, s45, 2")
    P(f"s_add_u32 s47, s47, s{S_WAVE}")
    P("s_mul_i32 s47, s47, 2304")
    P(f"v_lshlrev_b32 v{V_T+3}, 7, v{l}")
    P(f"v_add_u32 v{V_T+3}, s47, v{V_T+3}")
    P(f"v_cmp_gt_u32 vcc, 18, v{l}")
    P(f"v_mov_b32 v{V_T+5}, 0x80000000")
    P(f"v_lshrrev_b32 v{V_T}, 4, v{l}")
    P(f"v_cndmask_b32 v{V_T+3}, v{V_T+5}, v{V_T+3}, vcc")
    P(f"v_lshlrev_b32 v{V_BOFF}, 4, v{V_T}")
    P(f"v_lshlrev_b32 v{V_WA}, 4, v{l}")
    P(f"v_lshrrev_b32 v{V_T+2}, 5, v{l}")
    P(f"v_mul_u32_u24 v{V_T+2}, 1536, v{V_T+2}")
    P(f"v_add_u32 v{V_WA1}, 1536, v{V_WA}")
    P(f"v_add_u32 v{V_WB}, v{V_WA}, v{V_T+2}")
    P(f"v_add_u32 v{V_WA2}, 3072, v{V_WA}")
    P(f"v_add_u32 v{V_WB1}, 1536, v{V_WB}")
    P(f"s_sub_u32 s46, 1, s{S_PY}")
    P("s_lshl_b32 s46, s46, 2")
    P(f"s_sub_u32 s47, 1, s{S_PX}")
    P("s_add_u32 s46, s46, s47")
    P(f"s_mul_i32 s{S_WG}, s46, 18432")
    P(f"s_mul_i32 s{S_WL}, s{S_WAVE}, {WPH}")
    P(f"s_add_u32 s{S_WL}, s{S_WL}, {WB}")
    P(f"s_lshl_b32 s46, s{S_WAVE}, 6")
    P(f"s_lshl_b32 s{S_XL}, s{S_WAVE}, 10")
    P(f"s_lshl_b32 s47, s{S_STRIP}, 4")
    P("s_sub_u32 s47, s47, 1")
    t = V_T + 6
    P(f"v_add_u32 v{t}, s46, v{l}")
    P(f"v_mul_u32_u24 v{t+1}, 4682, v{t}")
    P(f"v_lshrrev_b32 v{t+1}, 16, v{t+1}")
    P(f"v_mul_u32_u24 v{t+2}, 14, v{t+1}")
    P(f"v_sub_u32 v{t+2}, v{t}, v{t+2}")
    P(f"v_add_u32 v{t+3}, s47, v{t+1}")
    P(f"v_cmp_gt_u32 vcc, 12, v{t+2}")
    P(f"v_mul_i32_i24 v{t+4}, 192, v{t+3}")
    P(f"v_lshl_add_u32 v{t+4}, v{t+2}, 4, v{t+4}")
    P(f"v_cndmask_b32 v{t+4}, v{V_T+5}, v{t+4}, vcc")
    P(f"v_cmp_gt_u32 vcc, 18, v{t+1}")
    P(f"s_sub_u32 s{S_XR}, s{S_R0}, 1")
    P(f"s_mul_i32 s{S_XG}, s{S_XR}, 43008")
    P(f"v_cndmask_b32 v{t+4}, v{V_T+5}, v{t+4}, vcc")
    P(f"v_cmp_gt_u32 vcc, 224, v{t+3}")
    P(f"s_mov_b32 s{S_XSZ}, 9633792")
    P(f"s_nop 0")
    P(f"v_cndmask_b32 v{V_X0}, v{V_T+5}, v{t+4}, vcc")
    P("s_waitcnt lgkmcnt(0)")
    stamp(P, args, 1)
    for (r, lo, sz) in ((S_W, 6, 294912), (S_X, 4, 9633792), (S_B, 24, 192), (S_O, 26, 38535168)):
        P(f"s_mov_b32 s{r}, s{lo}")
        P(f"s_mov_b32 s{r+1}, s{lo+1}")
        P(f"s_mov_b32 s{r+2}, {sz}")
        P(f"s_mov_b32 s{r+3}, 0x20000")
        if r == S_W and args.warm:
            P(f"buffer_load_dword v{V_D}, v{V_T+3}, s[{S_W}:{S_W+3}], 0 offen")
    vm = VM(["warm"] if args.warm else [])

    def late_setup():
        q, p = V_T, V_T + 1
        L = []
        A = L.append
        A(f"v_and_b32 v{p}, 15, v{l}")
        A(f"v_add_u32 v{V_T+2}, s{S_PX}, v{p}")
        A(f"v_mul_u32_u24 v{V_T+2}, 224, v{V_T+2}")
        A(f"v_lshl_add_u32 v{V_T+2}, v{q}, 4, v{V_T+2}")
        A(f"s_mul_i32 s46, s{S_PY}, {XROW}")
        A(f"v_add_u32 v{V_LDS}, s46, v{V_T+2}")
        A(f"v_mul_u32_u24 v{V_T+2}, 384, v{p}")
        A(f"v_lshl_add_u32 v{V_T+2}, v{q}, 4, v{V_T+2}")
        A(f"s_mul_i32 s46, s{S_PX}, 192")
        A(f"v_add_u32 v{V_OUT}, s46, v{V_T+2}")
        A(f"s_lshl_b32 s46, s{S_R0}, 1")
        A(f"s_add_u32 s46, s46, s{S_PY}")
        A("s_mul_i32 s46, s46, 448")
        A(f"s_lshl_b32 s47, s{S_STRIP}, 5")
        A("s_add_u32 s46, s46, s47")
        A(f"s_mul_i32 s{S_OUT}, s46, 192")
        A(f"v_and_b32 v{V_T+2}, 1, v{q}")
        A(f"v_mul_u32_u24 v{V_T+2}, 3080, v{V_T+2}")
        A(f"v_lshrrev_b32 v{V_T+4}, 1, v{q}")
        A(f"v_mul_u32_u24 v{V_T+4}, 1536, v{V_T+4}")
        A(f"v_add_u32 v{V_T+2}, v{V_T+2}, v{V_T+4}")
        A(f"v_bfe_u32 v{V_T+4}, v{l}, 2, 2")
        A(f"v_mul_u32_u24 v{V_T+4}, 192, v{V_T+4}")
        A(f"v_add_u32 v{V_T+2}, v{V_T+2}, v{V_T+4}")
        A(f"v_and_b32 v{V_T+4}, 3, v{l}")
        A(f"v_lshl_add_u32 v{V_T+2}, v{V_T+4}, 4, v{V_T+2}")
        A(f"v_add_u32 v{V_TR}, s{S_WL}, v{V_T+2}")
        return L

    PB, QB = BFR, BFR + 24
    def bfr(s, g):
        return BFR + 4 * (((s + 1) & 1) * G + g)
    assert 2 * G * 4 <= 48 and 4 * G <= 24
    X = lambda rows: [f"x{r}" for r in rows]
    first = list(range(1, G + 2)) + [0]
    rest = list(range(G + 2, NXROWS))
    xs = {s: [] for s in range(13)}
    lo = args.xlate
    per = args.xper
    for i, r in enumerate(rest):
        xs[min(12, lo + i // per)].append(r)

    def biasloads():
        for j in range(3):
            P(f"buffer_load_dwordx4 {rng('v', OUTP+4*j, 4)}, v{V_BOFF}, s[{S_B}:{S_B+3}], 0 offen offset:{64*j}")
            vm.add("bias")
    for it in wdma(0): emit(P, vm, it)
    if args.w1first:
        for it in wdma(1): emit(P, vm, it)
    for r in first:
        for it in xdma(r): emit(P, vm, it)
    biasloads()
    if not args.w1first:
        for it in wdma(1): emit(P, vm, it)
    for i in late_setup(): P(i)
    stamp(P, args, 2)

    NM = 6 * G
    for s in range(13):
        mf = []
        if s >= 1:
            P("s_waitcnt lgkmcnt(0)")
            for g in range(G):
                for t in range(6):
                    mf.append(mfma(ACC[g], t, s - 1, bfr(s - 1, g), s - 1 == 0))
        if s == 0:
            P(vm.wait([f"w0"] + X(first)))
            P("s_barrier")
            stamp(P, args, 3)
            for it in [bread(bfr(0, g), g + 1, 0, 0) for g in range(G)] + trreads(0): emit(P, vm, it)
            for it in wdma(2) + wdma(3): emit(P, vm, it)
            P(vm.wait(["bias"]))
            for j in range(3):
                for i in range(4):
                    P(f"v_lshlrev_b32 v{BIAS+8*j+2*i}, 16, v{OUTP+4*j+i}")
                    P(f"v_and_b32 v{BIAS+8*j+2*i+1}, 0xffff0000, v{OUTP+4*j+i}")
        elif s <= 11:
            tap, ks = divmod(s, 3)
            a, b = tap >> 1, tap & 1
            breads = [bread(bfr(s, g), g + 1 - a, b, ks) for g in range(G)]
            trs = trreads(s)
            dm = wdma(s + 3) if s + 3 <= 11 else []
            xd = []
            for r in xs[s]: xd += xdma(r)
            if "nodma" in EXP: dm = []
            at = {}
            def put(g, items):
                at.setdefault(g, []).extend(items)
            wpos = args.wwait
            order = []
            reads = breads + trs
            dmas = [x for x in dm if x[1] is not None]
            if dm:
                dgroups = [dm[0:3], [dm[3]], [dm[4], dm[5]], [dm[7]], [dm[8]], [dm[9]]]
            else:
                dgroups = []
            ri = 0
            dpos = [int(x) for x in args.dpos.split(",")]
            xq = pack(xd, budget=12) if xd else []
            if dgroups and xq:
                k = len(xq)
                span = NM - k - 2
                dpos = [2 + (i * (span - 1)) // 5 for i in range(6)]
            dmap = dict(zip(dpos, dgroups))
            last_w = max(dmap.keys()) if dmap else -1
            free = [g for g in range(NM) if g not in dmap]
            if xq:
                if dmap:
                    cand = [g for g in free if g > last_w]
                    xpos = cand[:len(xq)] if len(cand) >= len(xq) else None
                    assert xpos is not None, (s, cand, len(xq))
                else:
                    n = len(xq)
                    cand = free[G + 1:]
                    xpos = [cand[(i * (len(cand) - 1)) // max(1, n - 1)] for i in range(n)] if n > 1 else [cand[0]]
                for g, b in zip(xpos, xq): put(g, b)
                free = [g for g in free if g not in xpos]
            for it in reads:
                g = free[ri]
                if ri == G:
                    put(g, [(vm_wait_placeholder(s), None, 0)])
                put(g, [it]); ri += 1
            for g, b in dmap.items(): put(g, b)
            for i, m in enumerate(mf):
                P(m)
                for it in at.get(i, []):
                    if isinstance(it[0], tuple):
                        P(vm.wait([f"w{s}"]))
                    else:
                        emit(P, vm, it)
            stamp(P, args, 3 + s)
        else:
            xd = []
            for r in xs[12]: xd += xdma(r)
            pre = rowreads(QB, G)
            interleave(P, vm, mf[:9], xd + pre)
            cv = cvts(ACC[0], 0) + cvts(ACC[0], 1) + cvts(ACC[0], 2)
            interleave(P, vm, mf[9:], cv)
    P(vm.wait(X(range(NXROWS))))
    P("s_barrier")
    P("L_main:")
    stamp(P, args, 15)

    def group(vm, accp, old, new, row, extra_first, epis, tail=[], pre_st=[]):
        mf = [mfma(accp, t, s, old + 4 * (s - 6), s == 6) for s in range(6, 12) for t in range(6)]
        e = []
        for x in epis: e += x
        n1 = len(e) if len(epis) == 1 else (len(e) + 1) // 2
        if pre_st:
            ef = list(extra_first)
            first_f = []
            for i in range(max(len(ef), len(pre_st))):
                if i < len(ef): first_f.append(ef[i])
                if i < len(pre_st): first_f.append(pre_st[i])
            interleave(P, vm, mf[:12], first_f)
            interleave(P, vm, mf[12:], e[:n1])
        else:
            interleave(P, vm, mf[:6], list(extra_first))
            interleave(P, vm, mf[6:], e[:n1])
        mf = [mfma(accp, t, s, new + 4 * s, False) for s in range(0, 6) for t in range(6)]
        P("s_waitcnt lgkmcnt(0)")
        reads = rowreads(old, row + 2)
        interleave(P, vm, mf, mix(reads, e[n1:]) + list(tail))

    P("s_waitcnt lgkmcnt(0)")
    E = lambda a: epilogue(a, sf)
    st0 = [store(0, sf), store(1, sf), store(2, sf), outadv()]
    if "nost" in EXP: st0 = [outadv()]
    if G == 5:
        group(vm, ACC[0], QB, PB, G, rowreads(PB, G + 1), [E(ACC[1]), E(ACC[2])], pre_st=st0)
        stamp(P, args, 16)
        group(vm, ACC[1], PB, QB, G + 1, [], [E(ACC[3]), E(ACC[4])])
        group(vm, ACC[2], QB, PB, G + 2, [], [E(ACC[0]), E(ACC[1])],
              tail=[S(f"s_sub_u32 s{S_CNT}, s{S_NG}, {G+3}"), V(f"v_add_u32 v{V_LDS}, {(G+3)*XROW}, v{V_LDS}")])
        A0, A1 = ACC[0], ACC[2]
    elif G == 4:
        group(vm, ACC[0], QB, PB, G, rowreads(PB, G + 1), [E(ACC[1]), E(ACC[2])], pre_st=st0)
        stamp(P, args, 16)
        group(vm, ACC[1], PB, QB, G + 1, [], [E(ACC[3]), E(ACC[0])])
        group(vm, ACC[2], QB, PB, G + 2, [], [E(ACC[1])],
              tail=[S(f"s_sub_u32 s{S_CNT}, s{S_NG}, {G+3}"), V(f"v_add_u32 v{V_LDS}, {(G+3)*XROW}, v{V_LDS}")])
        A0, A1 = ACC[0], ACC[2]
    P("L_loop:")
    dec = [S(f"s_sub_u32 s{S_CNT}, s{S_CNT}, 1"), S(f"s_cmp_eq_u32 s{S_CNT}, 0")]
    group(None, A0, PB, QB, 0, [], [E(A1)], tail=dec)
    P("s_cbranch_scc1 L_fin1")
    group(None, A1, QB, PB, 1, [], [E(A0)], tail=[V(f"v_add_u32 v{V_LDS}, {2*XROW}, v{V_LDS}")] + dec)
    P("s_cbranch_scc0 L_loop")
    P("s_nop 7")
    for it in E(A1): emit(P, None, it)
    P("s_branch L_done")
    P("L_fin1:")
    P("s_nop 7")
    for it in E(A0): emit(P, None, it)
    P("L_done:")
    T = V_D
    if args.stamps == 3:
        stamp(P, args, 17)
        P("s_waitcnt vmcnt(0)")
        stamp(P, args, 18)
        P("s_waitcnt lgkmcnt(0)")
        P(f"s_lshl_b32 s46, s2, 2"); P(f"s_add_u32 s46, s46, s{S_WAVE}")
        P("s_mov_b32 s47, 0")
        P("s_cmp_eq_u32 s46, 0")
        P("s_cbranch_scc1 L_wr")
        P("s_mov_b32 s47, 32")
        P("s_cmp_eq_u32 s46, 406")
        P("s_cbranch_scc0 L_end")
        P("L_wr:")
        P(f"v_mov_b32 v{T}, s47")
        P(f"v_cmp_eq_u32 vcc, 0, v{V_LANE}")
        P("s_and_saveexec_b64 s[48:49], vcc")
        for i in range(7):
            if i == 0:
                P(f"v_mov_b32 v{T+2}, s{S_STAMP}")
            else:
                P(f"s_sub_u32 s46, s{S_STAMP+2*i}, s{S_STAMP}")
                P(f"v_mov_b32 v{T+2}, s46")
            P(f"global_store_dword v{T}, v{T+2}, s[58:59] offset:{4*i}")
            P("s_nop 1")
    elif args.stamps:
        stamp(P, args, 17)
        P("s_waitcnt vmcnt(0)")
        stamp(P, args, 18)
        P("s_waitcnt lgkmcnt(0)")
        P(f"s_lshl_b32 s46, s2, 2"); P(f"s_add_u32 s46, s46, s{S_WAVE}"); P(f"s_lshl_b32 s46, s46, {8 if args.stamps >= 4 else 6}")
        P(f"v_mov_b32 v{T}, s46")
        P(f"v_cmp_eq_u32 vcc, 0, v{V_LANE}")
        P("s_and_saveexec_b64 s[48:49], vcc")
        for i in range(19 if args.stamps >= 4 else 7):
            P(f"v_mov_b32 v{T+2}, s{S_STAMP+2*i}"); P(f"v_mov_b32 v{T+3}, s{S_STAMP+2*i+1}")
            P(f"global_store_dwordx2 v{T}, v[{T+2}:{T+3}], s[58:59] offset:{8*i}") if (T + 2) % 2 == 0 else None
            P("s_nop 1")
    P("L_end:")
    P("s_endpgm")
    ftr = f"""
.section .rodata,"a"
.p2align 6
.amdhsa_kernel {NAME}
  .amdhsa_next_free_vgpr 512
  .amdhsa_next_free_sgpr 102
  .amdhsa_accum_offset 256
  .amdhsa_group_segment_fixed_size 0
  .amdhsa_kernarg_size 48
  .amdhsa_user_sgpr_count 2
  .amdhsa_user_sgpr_kernarg_segment_ptr 1
  .amdhsa_system_sgpr_workgroup_id_x 1
.end_amdhsa_kernel
"""
    return hdr + P.text() + ftr

def vm_wait_placeholder(s):
    return ("wait", s)

if __name__ == "__main__":
    ap = argparse.ArgumentParser()
    ap.add_argument("-o", default="standalone__transposed_strided__vision.s")
    ap.add_argument("--G", type=int, default=5)
    ap.add_argument("--store-flags", default="sc0 sc1")
    ap.add_argument("--stamps", type=int, default=0)
    ap.add_argument("--warm", type=int, default=1)
    ap.add_argument("--exp", default="")
    ap.add_argument("--xflags", default="nt")
    ap.add_argument("--wflags", default="")
    ap.add_argument("--w1first", type=int, default=0)
    ap.add_argument("--xlate", type=int, default=9)
    ap.add_argument("--xper", type=int, default=4)
    ap.add_argument("--wwait", type=int, default=5)
    ap.add_argument("--dpos", default="2,7,12,17,22,26")
    args = ap.parse_args()
    open(args.o, "w").write(gen(args))
```

```python
import sys, argparse

NAME = "standalone__transposed_strided__vision_kernel"

XROW = 4096
NXROWS = 15
WB = NXROWS * XROW
WSLOT = 6160
NSLOT = 4
WPH = WSLOT * NSLOT
LDS_BYTES = WB + 4 * WPH

def wreg(s, t):
    f = s * 6 + t
    if f < 64:
        return "a", 4 * f
    return "v", 224 + 4 * (f - 64)
def rng(kind, base, n):
    return f"{kind}[{base}:{base+n-1}]"
ACC = [0, 24, 48, 72, 96]
BIAS = 120
BFR = 144
OUTP = 192
V_LDS, V_OUT, V_TR = 204, 205, 206
V_WA, V_WB, V_WA1, V_WB1, V_WA2 = 207, 208, 209, 210, 211
V_X0 = 212
V_BOFF = 213
V_LANE = 214
V_T = 96
V_D = 216

S_X, S_W, S_O, S_B = 8, 12, 16, 20
S_WAVE, S_PX, S_PY, S_STRIP, S_R0, S_NG, S_OUT, S_WG, S_T, S_WL, S_XR = 28, 29, 31, 32, 33, 34, 35, 36, 37, 38, 39
S_T2, S_CNT, S_XSZ, S_XL, S_XG = 40, 41, 42, 43, 44
S_STAMP = 60

class Prog:
    def __init__(self):
        self.L = []
    def __call__(self, s):
        if s is not None:
            self.L.append(s)
    def text(self):
        return "\n".join(("" if l.endswith(":") else "    ") + l for l in self.L) + "\n"

class VM:
    def __init__(self, ops=None):
        self.ops = list(ops) if ops else []
    def add(self, tag):
        self.ops.append(tag)
    def wait(self, tags):
        idx = [i for i, t in enumerate(self.ops) if t in tags]
        if not idx: return None
        n = len(self.ops) - 1 - max(idx)
        assert n <= 63, n
        return f"s_waitcnt vmcnt({n})"

C_S, C_V, C_DS, C_DMA, C_ST = 4, 4, 8, 8, 8
def S(x): return (x, None, C_S)
def V(x): return (x, None, C_V)
def D(x): return (x, None, C_DS)
EXP = ""; XFL = "nt"; WFL = ""

def mfma(acc, t, s, bf, first):
    k, b = wreg(s, t)
    d = rng("v", acc + 4 * t, 4)
    c = rng("v", BIAS + 4 * t, 4) if first else d
    return f"v_mfma_f32_16x16x32_bf16 {d}, {rng(k, b, 4)}, {rng('v', bf, 4)}, {c}"

def bread(bf, row, b, ks):
    off = row * XROW + (1 - b) * 224 + ks * 64
    assert off < 65536
    return D(f"ds_read_b128 {rng('v', bf, 4)}, v{V_LDS} offset:{off}")

def rowreads(buf, row):
    return [bread(buf + 4 * (b * 3 + ks), row, b, ks) for b in range(2) for ks in range(3)]

def trreads(s):
    L = []
    slot = s % NSLOT
    for t in range(6):
        j, tb = t >> 1, t & 1
        k, b = wreg(s, t)
        for h in range(2):
            off = slot * WSLOT + h * 768 + j * 64 + tb * 8
            L.append(D(f"ds_read_b64_tr_b16 {rng(k, b + 2 * h, 2)}, v{V_TR} offset:{off}"))
    return L

def wdma(s):
    slot = s % NSLOT
    tap, ks = divmod(s, 3)
    a, b = tap >> 1, tap & 1
    goff = (2 * a * 4 + 2 * b) * 18432 + ks * 6144
    tag = f"w{s}"
    def ld(v, off):
        o = f" offset:{off}" if off else ""
        return (f"buffer_load_dwordx4 v{v}, s[{S_W}:{S_W+3}], s{S_T} offen{o} {WFL} lds".replace("  ", " "), tag, C_DMA)
    return [
        S(f"s_add_u32 m0, s{S_WL}, {slot * WSLOT}"),
        S(f"s_add_u32 s{S_T}, s{S_WG}, {goff}"),
        ld(V_WA, 0), ld(V_WB, 1024), ld(V_WA1, 2048),
        S(f"s_add_u32 m0, s{S_WL}, {slot * WSLOT + 3080}"),
        S("s_nop 0"),
        ld(V_WA1, 0), ld(V_WB1, 1024), ld(V_WA2, 2048),
    ]

def xdma(rho):
    tag = f"x{rho}"
    L = []
    chk = rho in (0, 13, 14)
    if chk:
        L.append(S(f"s_add_u32 s{S_T2}, s{S_XR}, {rho}"))
        L.append(S(f"s_cmp_lt_u32 s{S_T2}, 224"))
        L.append(S(f"s_cselect_b32 s{S_X+2}, s{S_XSZ}, 0"))
    L.append(S(f"s_add_u32 m0, s{S_XL}, {rho * XROW}"))
    L.append(S(f"s_add_u32 s{S_T2}, s{S_XG}, {rho * 43008}"))
    L.append((f"buffer_load_dwordx4 v{V_X0}, s[{S_X}:{S_X+3}], s{S_T2} offen {XFL} lds".replace("  ", " "), tag, C_DMA))
    if chk:
        L.append(S(f"s_mov_b32 s{S_X+2}, s{S_XSZ}"))
    return L

def cvts(acc, j):
    o = OUTP + 4 * j
    t0, t1 = acc + 8 * j, acc + 8 * j + 4
    return [V(f"v_cvt_pk_bf16_f32 v{o}, v{t0}, v{t0+1}"), V(f"v_cvt_pk_bf16_f32 v{o+1}, v{t0+2}, v{t0+3}"),
            V(f"v_cvt_pk_bf16_f32 v{o+2}, v{t1}, v{t1+1}"), V(f"v_cvt_pk_bf16_f32 v{o+3}, v{t1+2}, v{t1+3}")]
def store(j, sf):
    o = OUTP + 4 * j
    return (f"buffer_store_dwordx4 {rng('v', o, 4)}, v{V_OUT}, s[{S_O}:{S_O+3}], s{S_OUT} offen offset:{64*j} {sf}".rstrip(), "st", C_ST)
def outadv():
    return S(f"s_add_u32 s{S_OUT}, s{S_OUT}, {2*448*192}")
def epilogue(acc, sf):
    L = []
    for j in range(3):
        L += cvts(acc, j) + [store(j, sf)]
    L.append(outadv())
    if "nost" in EXP: L = [x for x in L if x[1] != "st"]
    return L

def emit(P, vm, item):
    txt, tag = item[0], item[1]
    P(txt)
    if tag is not None and vm is not None:
        vm.add(tag)

def pack(fillers, budget=8):
    out = []; cur = []; c = 0
    for it in fillers:
        if cur and c + it[2] > budget:
            out.append(cur); cur = []; c = 0
        cur.append(it); c += it[2]
    if cur: out.append(cur)
    return out

def interleave(P, vm, mfmas, fillers, start=0, end=None, spread=True):
    n = len(mfmas)
    if end is None: end = n
    bundles = pack(fillers)
    gaps = end - start
    if len(bundles) > gaps:
        nb = []
        per = len(bundles) / gaps
        for g in range(gaps):
            lo, hi = int(round(g * per)), int(round((g + 1) * per))
            nb.append([x for b in bundles[lo:hi] for x in b])
        bundles = nb
        pos = list(range(start, end))
    elif spread:
        pos = [start + (i * gaps) // len(bundles) for i in range(len(bundles))] if bundles else []
    else:
        pos = list(range(start, start + len(bundles)))
    at = dict(zip(pos, bundles))
    for i, m in enumerate(mfmas):
        P(m)
        for it in at.get(i, []):
            emit(P, vm, it)

def placed(P, vm, mfmas, at):
    assert max(at.keys(), default=0) < len(mfmas), (max(at.keys()), len(mfmas))
    for i, m in enumerate(mfmas):
        P(m)
        for it in at.get(i, []):
            emit(P, vm, it)

def mix(a, b):
    out = []; i = j = 0
    while i < len(a) or j < len(b):
        if j >= len(b) or (i < len(a) and i * len(b) <= j * len(a)):
            out.append(a[i]); i += 1
        else:
            out.append(b[j]); j += 1
    return out

COARSE = {0: 0, 1: 1, 2: 2, 3: 3, 14: 7, 15: 4, 17: 5, 18: 6}
def stamp(P, args, idx):
    if args.stamps in (1, 3):
        if idx in COARSE: i = COARSE[idx]; P(f"s_memrealtime s[{S_STAMP+2*i}:{S_STAMP+2*i+1}]")
    elif args.stamps == 4:
        P(f"s_memtime s[{S_STAMP+2*idx}:{S_STAMP+2*idx+1}]")
    elif args.stamps == 5:
        P(f"s_memrealtime s[{S_STAMP+2*idx}:{S_STAMP+2*idx+1}]")

def gen(args):
    G = args.G
    sf = args.store_flags
    global EXP, XFL, WFL
    EXP = args.exp; XFL = args.xflags; WFL = args.wflags
    P = Prog()
    hdr = f"""; Transposed conv 4x4 stride 2, x(1,224,224,96) bf16 -> out(1,448,448,96) bf16, gfx950.
; One workgroup = 16-pixel-wide strip x 12/13 input rows; wave = output phase (py, px).
; Each wave keeps the 4 taps of its phase (384 x 96 bf16) in 288 registers and streams pixel rows from LDS.
; @launch grid=(256,1,1) block=(256,1,1) lds={LDS_BYTES}
.amdgcn_target "amdgcn-amd-amdhsa--gfx950"
.text
.globl {NAME}
.p2align 8
.type {NAME},@function
{NAME}:
"""
    stamp(P, args, 0)
    P("s_load_dwordx4 s[4:7], s[0:1], 0")
    P("s_load_dwordx4 s[24:27], s[0:1], 16")
    if args.stamps:
        P(f"s_load_dwordx2 s[58:59], s[0:1], {32 if args.stamps == 3 else 40}")
    P("s_and_b32 s3, s2, 7")
    P("s_lshr_b32 s45, s2, 3")
    P("s_and_b32 s46, s3, 1")
    P("s_sub_u32 s46, 32, s46")
    P("s_mul_i32 s3, s3, 63")
    P("s_add_u32 s3, s3, 1")
    P("s_lshr_b32 s3, s3, 1")
    P("s_add_u32 s3, s3, s45")
    P("s_cmp_ge_u32 s45, s46")
    P("s_cbranch_scc1 L_end")
    l = V_LANE
    P(f"v_lshrrev_b32 v{V_T}, 6, v0")
    P(f"v_and_b32 v{l}, 63, v0")
    P(f"s_mul_i32 s{S_STRIP}, s3, 3641")
    P(f"v_readfirstlane_b32 s{S_WAVE}, v{V_T}")
    P(f"s_lshr_b32 s{S_STRIP}, s{S_STRIP}, 16")
    P(f"s_mul_i32 s46, s{S_STRIP}, 18")
    P("s_sub_u32 s46, s3, s46")
    P(f"s_mul_i32 s{S_R0}, s46, 12")
    P("s_min_u32 s47, s46, 8")
    P(f"s_add_u32 s{S_R0}, s{S_R0}, s47")
    P(f"s_and_b32 s{S_PX}, s{S_WAVE}, 1")
    P(f"s_lshr_b32 s{S_PY}, s{S_WAVE}, 1")
    P("s_cmp_lt_u32 s46, 8")
    P(f"s_cselect_b32 s{S_NG}, 13, 12")
    if args.codepf:
        P("s_getpc_b64 s[50:51]")
        P("L_pc:")
        P(f"s_lshl_b32 s52, s45, 2")
        P(f"s_add_u32 s52, s52, s{S_WAVE}")
        P(f"s_mul_i32 s52, s52, {128 * args.codepf}")
        P(f"v_lshlrev_b32 v{V_D+2}, 7, v{l}")
        P(f"v_add_u32 v{V_D+2}, s52, v{V_D+2}")
        P(f"v_min_u32 v{V_D+2}, L_end-L_pc-4, v{V_D+2}")
        P(f"v_cmp_gt_u32 vcc, {args.codepf}, v{l}")
        P(f"s_and_saveexec_b64 s[54:55], vcc")
        P(f"global_load_dword v{V_D+3}, v{V_D+2}, s[50:51]")
        P(f"s_mov_b64 exec, s[54:55]")
    P(f"s_lshl_b32 s47, s45, 2")
    P(f"s_add_u32 s47, s47, s{S_WAVE}")
    P("s_mul_i32 s47, s47, 2304")
    P(f"v_lshlrev_b32 v{V_T+3}, 7, v{l}")
    P(f"v_add_u32 v{V_T+3}, s47, v{V_T+3}")
    P(f"v_cmp_gt_u32 vcc, 18, v{l}")
    P(f"v_mov_b32 v{V_T+5}, 0x80000000")
    P(f"v_lshrrev_b32 v{V_T}, 4, v{l}")
    P(f"v_cndmask_b32 v{V_T+3}, v{V_T+5}, v{V_T+3}, vcc")
    P(f"v_lshlrev_b32 v{V_BOFF}, 4, v{V_T}")
    P(f"v_lshlrev_b32 v{V_WA}, 4, v{l}")
    P(f"v_lshrrev_b32 v{V_T+2}, 5, v{l}")
    P(f"v_mul_u32_u24 v{V_T+2}, 1536, v{V_T+2}")
    P(f"v_add_u32 v{V_WA1}, 1536, v{V_WA}")
    P(f"v_add_u32 v{V_WB}, v{V_WA}, v{V_T+2}")
    P(f"v_add_u32 v{V_WA2}, 3072, v{V_WA}")
    P(f"v_add_u32 v{V_WB1}, 1536, v{V_WB}")
    P(f"s_sub_u32 s46, 1, s{S_PY}")
    P("s_lshl_b32 s46, s46, 2")
    P(f"s_sub_u32 s47, 1, s{S_PX}")
    P("s_add_u32 s46, s46, s47")
    P(f"s_mul_i32 s{S_WG}, s46, 18432")
    P(f"s_mul_i32 s{S_WL}, s{S_WAVE}, {WPH}")
    P(f"s_add_u32 s{S_WL}, s{S_WL}, {WB}")
    P(f"s_lshl_b32 s46, s{S_WAVE}, 6")
    P(f"s_lshl_b32 s{S_XL}, s{S_WAVE}, 10")
    P(f"s_lshl_b32 s47, s{S_STRIP}, 4")
    P("s_sub_u32 s47, s47, 1")
    t = V_T + 6
    P(f"v_add_u32 v{t}, s46, v{l}")
    P(f"v_mul_u32_u24 v{t+1}, 4682, v{t}")
    P(f"v_lshrrev_b32 v{t+1}, 16, v{t+1}")
    P(f"v_mul_u32_u24 v{t+2}, 14, v{t+1}")
    P(f"v_sub_u32 v{t+2}, v{t}, v{t+2}")
    P(f"v_add_u32 v{t+3}, s47, v{t+1}")
    P(f"v_cmp_gt_u32 vcc, 12, v{t+2}")
    P(f"v_mul_i32_i24 v{t+4}, 192, v{t+3}")
    P(f"v_lshl_add_u32 v{t+4}, v{t+2}, 4, v{t+4}")
    P(f"v_cndmask_b32 v{t+4}, v{V_T+5}, v{t+4}, vcc")
    P(f"v_cmp_gt_u32 vcc, 18, v{t+1}")
    P(f"s_sub_u32 s{S_XR}, s{S_R0}, 1")
    P(f"s_mul_i32 s{S_XG}, s{S_XR}, 43008")
    P(f"v_cndmask_b32 v{t+4}, v{V_T+5}, v{t+4}, vcc")
    P(f"v_cmp_gt_u32 vcc, 224, v{t+3}")
    P(f"s_mov_b32 s{S_XSZ}, 9633792")
    P(f"s_nop 0")
    P(f"v_cndmask_b32 v{V_X0}, v{V_T+5}, v{t+4}, vcc")
    P("s_waitcnt lgkmcnt(0)")
    stamp(P, args, 1)
    for (r, lo, sz) in ((S_W, 6, 294912), (S_X, 4, 9633792), (S_B, 24, 192), (S_O, 26, 38535168)):
        P(f"s_mov_b32 s{r}, s{lo}")
        P(f"s_mov_b32 s{r+1}, s{lo+1}")
        P(f"s_mov_b32 s{r+2}, {sz}")
        P(f"s_mov_b32 s{r+3}, 0x20000")
        if r == S_W and args.warm:
            P(f"buffer_load_dword v{V_D}, v{V_T+3}, s[{S_W}:{S_W+3}], 0 offen")
    vm = VM((["code"] if args.codepf else []) + (["warm"] if args.warm else []))

    def late_setup():
        q, p = V_T, V_T + 1
        L = []
        A = L.append
        A(f"v_and_b32 v{p}, 15, v{l}")
        A(f"v_add_u32 v{V_T+2}, s{S_PX}, v{p}")
        A(f"v_mul_u32_u24 v{V_T+2}, 224, v{V_T+2}")
        A(f"v_lshl_add_u32 v{V_T+2}, v{q}, 4, v{V_T+2}")
        A(f"s_mul_i32 s46, s{S_PY}, {XROW}")
        A(f"v_add_u32 v{V_LDS}, s46, v{V_T+2}")
        A(f"v_mul_u32_u24 v{V_T+2}, 384, v{p}")
        A(f"v_lshl_add_u32 v{V_T+2}, v{q}, 4, v{V_T+2}")
        A(f"s_mul_i32 s46, s{S_PX}, 192")
        A(f"v_add_u32 v{V_OUT}, s46, v{V_T+2}")
        A(f"s_lshl_b32 s46, s{S_R0}, 1")
        A(f"s_add_u32 s46, s46, s{S_PY}")
        A("s_mul_i32 s46, s46, 448")
        A(f"s_lshl_b32 s47, s{S_STRIP}, 5")
        A("s_add_u32 s46, s46, s47")
        A(f"s_mul_i32 s{S_OUT}, s46, 192")
        A(f"v_and_b32 v{V_T+2}, 1, v{q}")
        A(f"v_mul_u32_u24 v{V_T+2}, 3080, v{V_T+2}")
        A(f"v_lshrrev_b32 v{V_T+4}, 1, v{q}")
        A(f"v_mul_u32_u24 v{V_T+4}, 1536, v{V_T+4}")
        A(f"v_add_u32 v{V_T+2}, v{V_T+2}, v{V_T+4}")
        A(f"v_bfe_u32 v{V_T+4}, v{l}, 2, 2")
        A(f"v_mul_u32_u24 v{V_T+4}, 192, v{V_T+4}")
        A(f"v_add_u32 v{V_T+2}, v{V_T+2}, v{V_T+4}")
        A(f"v_and_b32 v{V_T+4}, 3, v{l}")
        A(f"v_lshl_add_u32 v{V_T+2}, v{V_T+4}, 4, v{V_T+2}")
        A(f"v_add_u32 v{V_TR}, s{S_WL}, v{V_T+2}")
        return L

    PB, QB = BFR, BFR + 24
    def bfr(s, g):
        return BFR + 4 * (((s + 1) & 1) * G + g)
    assert 2 * G * 4 <= 48 and 4 * G <= 24
    X = lambda rows: [f"x{r}" for r in rows]
    first = list(range(1, G + 2)) + [0]
    rest = list(range(G + 2, NXROWS))
    xs = {s: [] for s in range(13)}
    lo = args.xlate
    per = args.xper
    for i, r in enumerate(rest):
        xs[min(12, lo + i // per)].append(r)

    def biasloads():
        for j in range(3):
            P(f"buffer_load_dwordx4 {rng('v', OUTP+4*j, 4)}, v{V_BOFF}, s[{S_B}:{S_B+3}], 0 offen offset:{64*j}")
            vm.add("bias")
    for it in wdma(0): emit(P, vm, it)
    if args.w1first:
        for it in wdma(1): emit(P, vm, it)
    for r in first:
        for it in xdma(r): emit(P, vm, it)
    biasloads()
    if not args.w1first:
        for it in wdma(1): emit(P, vm, it)
    for i in late_setup(): P(i)
    stamp(P, args, 2)

    NM = 6 * G
    for s in range(13):
        mf = []
        if s >= 1:
            P("s_waitcnt lgkmcnt(0)")
            for g in range(G):
                for t in range(6):
                    mf.append(mfma(ACC[g], t, s - 1, bfr(s - 1, g), s - 1 == 0))
        if s == 0:
            P(vm.wait([f"w0"] + X(first)))
            P("s_barrier")
            stamp(P, args, 3)
            for it in [bread(bfr(0, g), g + 1, 0, 0) for g in range(G)] + trreads(0): emit(P, vm, it)
            for it in wdma(2) + wdma(3): emit(P, vm, it)
            P(vm.wait(["bias"]))
            for j in range(3):
                for i in range(4):
                    P(f"v_lshlrev_b32 v{BIAS+8*j+2*i}, 16, v{OUTP+4*j+i}")
                    P(f"v_and_b32 v{BIAS+8*j+2*i+1}, 0xffff0000, v{OUTP+4*j+i}")
        elif s <= 11:
            tap, ks = divmod(s, 3)
            a, b = tap >> 1, tap & 1
            breads = [bread(bfr(s, g), g + 1 - a, b, ks) for g in range(G)]
            trs = trreads(s)
            dm = wdma(s + 3) if s + 3 <= 11 else []
            xd = []
            for r in xs[s]: xd += xdma(r)
            if "nodma" in EXP: dm = []
            at = {}
            def put(g, items):
                at.setdefault(g, []).extend(items)
            wpos = args.wwait
            order = []
            reads = breads + trs
            dmas = [x for x in dm if x[1] is not None]
            if dm:
                dgroups = [dm[0:3], [dm[3]], [dm[4], dm[5]], [dm[7]], [dm[8]], [dm[9]]]
            else:
                dgroups = []
            ri = 0
            dpos = [int(x) for x in args.dpos.split(",")]
            xq = pack(xd, budget=12) if xd else []
            if dgroups and xq:
                k = len(xq)
                span = NM - k - 2
                dpos = [2 + (i * (span - 1)) // 5 for i in range(6)]
            dmap = dict(zip(dpos, dgroups))
            last_w = max(dmap.keys()) if dmap else -1
            free = [g for g in range(NM) if g not in dmap]
            if xq:
                if dmap:
                    cand = [g for g in free if g > last_w]
                    xpos = cand[:len(xq)] if len(cand) >= len(xq) else None
                    assert xpos is not None, (s, cand, len(xq))
                else:
                    n = len(xq)
                    cand = free[G + 1:]
                    xpos = [cand[(i * (len(cand) - 1)) // max(1, n - 1)] for i in range(n)] if n > 1 else [cand[0]]
                for g, b in zip(xpos, xq): put(g, b)
                free = [g for g in free if g not in xpos]
            for it in reads:
                g = free[ri]
                if ri == G:
                    put(g, [(vm_wait_placeholder(s), None, 0)])
                put(g, [it]); ri += 1
            for g, b in dmap.items(): put(g, b)
            for i, m in enumerate(mf):
                P(m)
                for it in at.get(i, []):
                    if isinstance(it[0], tuple):
                        P(vm.wait([f"w{s}"]))
                    else:
                        emit(P, vm, it)
            stamp(P, args, 3 + s)
        else:
            xd = []
            for r in xs[12]: xd += xdma(r)
            pre = rowreads(QB, G)
            interleave(P, vm, mf[:9], xd + pre)
            cv = cvts(ACC[0], 0) + cvts(ACC[0], 1) + cvts(ACC[0], 2)
            interleave(P, vm, mf[9:], cv)
    P(vm.wait(X(range(NXROWS))))
    P("s_barrier")
    P("L_main:")
    stamp(P, args, 15)

    def group(vm, accp, old, new, row, extra_first, epis, tail=[], pre_st=[]):
        mf = [mfma(accp, t, s, old + 4 * (s - 6), s == 6) for s in range(6, 12) for t in range(6)]
        e = []
        for x in epis: e += x
        n1 = len(e) if len(epis) == 1 else (len(e) + 1) // 2
        if pre_st:
            ef = list(extra_first)
            first_f = []
            for i in range(max(len(ef), len(pre_st))):
                if i < len(ef): first_f.append(ef[i])
                if i < len(pre_st): first_f.append(pre_st[i])
            interleave(P, vm, mf[:12], first_f)
            interleave(P, vm, mf[12:], e[:n1])
        else:
            interleave(P, vm, mf[:6], list(extra_first))
            interleave(P, vm, mf[6:], e[:n1])
        mf = [mfma(accp, t, s, new + 4 * s, False) for s in range(0, 6) for t in range(6)]
        P("s_waitcnt lgkmcnt(0)")
        reads = rowreads(old, row + 2)
        interleave(P, vm, mf, mix(reads, e[n1:]) + list(tail))

    P("s_waitcnt lgkmcnt(0)")
    E = lambda a: epilogue(a, sf)
    st0 = [store(0, sf), store(1, sf), store(2, sf), outadv()]
    if "nost" in EXP: st0 = [outadv()]
    if G == 5:
        group(vm, ACC[0], QB, PB, G, rowreads(PB, G + 1), [E(ACC[1]), E(ACC[2])], pre_st=st0)
        stamp(P, args, 16)
        group(vm, ACC[1], PB, QB, G + 1, [], [E(ACC[3]), E(ACC[4])])
        group(vm, ACC[2], QB, PB, G + 2, [], [E(ACC[0]), E(ACC[1])],
              tail=[S(f"s_sub_u32 s{S_CNT}, s{S_NG}, {G+3}"), V(f"v_add_u32 v{V_LDS}, {(G+3)*XROW}, v{V_LDS}")])
        A0, A1 = ACC[0], ACC[2]
    elif G == 4:
        group(vm, ACC[0], QB, PB, G, rowreads(PB, G + 1), [E(ACC[1]), E(ACC[2])], pre_st=st0)
        stamp(P, args, 16)
        group(vm, ACC[1], PB, QB, G + 1, [], [E(ACC[3]), E(ACC[0])])
        group(vm, ACC[2], QB, PB, G + 2, [], [E(ACC[1])],
              tail=[S(f"s_sub_u32 s{S_CNT}, s{S_NG}, {G+3}"), V(f"v_add_u32 v{V_LDS}, {(G+3)*XROW}, v{V_LDS}")])
        A0, A1 = ACC[0], ACC[2]
    P("L_loop:")
    dec = [S(f"s_sub_u32 s{S_CNT}, s{S_CNT}, 1"), S(f"s_cmp_eq_u32 s{S_CNT}, 0")]
    group(None, A0, PB, QB, 0, [], [E(A1)], tail=dec)
    P("s_cbranch_scc1 L_fin1")
    group(None, A1, QB, PB, 1, [], [E(A0)], tail=[V(f"v_add_u32 v{V_LDS}, {2*XROW}, v{V_LDS}")] + dec)
    P("s_cbranch_scc0 L_loop")
    P("s_nop 7")
    for it in E(A1): emit(P, None, it)
    P("s_branch L_done")
    P("L_fin1:")
    P("s_nop 7")
    for it in E(A0): emit(P, None, it)
    P("L_done:")
    T = V_D
    if args.stamps == 3:
        stamp(P, args, 17)
        P("s_waitcnt vmcnt(0)")
        stamp(P, args, 18)
        P("s_waitcnt lgkmcnt(0)")
        P(f"s_lshl_b32 s46, s2, 2"); P(f"s_add_u32 s46, s46, s{S_WAVE}")
        P("s_mov_b32 s47, 0")
        P("s_cmp_eq_u32 s46, 0")
        P("s_cbranch_scc1 L_wr")
        P("s_mov_b32 s47, 32")
        P("s_cmp_eq_u32 s46, 406")
        P("s_cbranch_scc0 L_end")
        P("L_wr:")
        P(f"v_mov_b32 v{T}, s47")
        P(f"v_cmp_eq_u32 vcc, 0, v{V_LANE}")
        P("s_and_saveexec_b64 s[48:49], vcc")
        for i in range(8):
            if i == 0:
                P(f"v_mov_b32 v{T+2}, s{S_STAMP}")
            else:
                P(f"s_sub_u32 s46, s{S_STAMP+2*i}, s{S_STAMP}")
                P(f"v_mov_b32 v{T+2}, s46")
            P(f"global_store_dword v{T}, v{T+2}, s[58:59] offset:{4*i}")
            P("s_nop 1")
    elif args.stamps:
        stamp(P, args, 17)
        P("s_waitcnt vmcnt(0)")
        stamp(P, args, 18)
        P("s_waitcnt lgkmcnt(0)")
        P(f"s_lshl_b32 s46, s2, 2"); P(f"s_add_u32 s46, s46, s{S_WAVE}"); P(f"s_lshl_b32 s46, s46, {8 if args.stamps >= 4 else 6}")
        P(f"v_mov_b32 v{T}, s46")
        P(f"v_cmp_eq_u32 vcc, 0, v{V_LANE}")
        P("s_and_saveexec_b64 s[48:49], vcc")
        for i in range(19 if args.stamps >= 4 else 7):
            P(f"v_mov_b32 v{T+2}, s{S_STAMP+2*i}"); P(f"v_mov_b32 v{T+3}, s{S_STAMP+2*i+1}")
            P(f"global_store_dwordx2 v{T}, v[{T+2}:{T+3}], s[58:59] offset:{8*i}") if (T + 2) % 2 == 0 else None
            P("s_nop 1")
    P("L_end:")
    P("s_endpgm")
    ftr = f"""
.section .rodata,"a"
.p2align 6
.amdhsa_kernel {NAME}
  .amdhsa_next_free_vgpr 512
  .amdhsa_next_free_sgpr 102
  .amdhsa_accum_offset 256
  .amdhsa_group_segment_fixed_size 0
  .amdhsa_kernarg_size 48
  .amdhsa_user_sgpr_count 2
  .amdhsa_user_sgpr_kernarg_segment_ptr 1
  .amdhsa_system_sgpr_workgroup_id_x 1
.end_amdhsa_kernel
"""
    return hdr + P.text() + ftr

def vm_wait_placeholder(s):
    return ("wait", s)

if __name__ == "__main__":
    ap = argparse.ArgumentParser()
    ap.add_argument("-o", default="standalone__transposed_strided__vision.s")
    ap.add_argument("--G", type=int, default=5)
    ap.add_argument("--store-flags", default="sc0 sc1")
    ap.add_argument("--stamps", type=int, default=0)
    ap.add_argument("--warm", type=int, default=1)
    ap.add_argument("--exp", default="")
    ap.add_argument("--codepf", type=int, default=0)
    ap.add_argument("--xflags", default="nt")
    ap.add_argument("--wflags", default="")
    ap.add_argument("--w1first", type=int, default=0)
    ap.add_argument("--xlate", type=int, default=9)
    ap.add_argument("--xper", type=int, default=4)
    ap.add_argument("--wwait", type=int, default=5)
    ap.add_argument("--dpos", default="2,7,12,17,22,26")
    args = ap.parse_args()
    open(args.o, "w").write(gen(args))
```

```python
import sys, argparse

NAME = "standalone__transposed_strided__vision_kernel"

XROW = 4096
NXROWS = 15
WB = NXROWS * XROW
WSLOT = 6160
NSLOT = 4
WPH = WSLOT * NSLOT
LDS_BYTES = WB + 4 * WPH

def wreg(s, t):
    f = s * 6 + t
    if f < 64:
        return "a", 4 * f
    return "v", 224 + 4 * (f - 64)
def rng(kind, base, n):
    return f"{kind}[{base}:{base+n-1}]"
ACC = [0, 24, 48, 72, 96]
BIAS = 120
BFR = 144
OUTP = 192
V_LDS, V_OUT, V_TR = 204, 205, 206
V_WA, V_WB, V_WA1, V_WB1, V_WA2 = 207, 208, 209, 210, 211
V_X0 = 212
V_BOFF = 213
V_LANE = 214
V_T = 96
V_D = 216

S_X, S_W, S_O, S_B = 8, 12, 16, 20
S_WAVE, S_PX, S_PY, S_STRIP, S_R0, S_NG, S_OUT, S_WG, S_T, S_WL, S_XR = 28, 29, 31, 32, 33, 34, 35, 36, 37, 38, 39
S_T2, S_CNT, S_XSZ, S_XL, S_XG = 40, 41, 42, 43, 44
S_STAMP = 60

class Prog:
    def __init__(self):
        self.L = []
    def __call__(self, s):
        if s is not None:
            self.L.append(s)
    def text(self):
        return "\n".join(("" if l.endswith(":") else "    ") + l for l in self.L) + "\n"

class VM:
    def __init__(self, ops=None):
        self.ops = list(ops) if ops else []
    def add(self, tag):
        self.ops.append(tag)
    def wait(self, tags):
        idx = [i for i, t in enumerate(self.ops) if t in tags]
        if not idx: return None
        n = len(self.ops) - 1 - max(idx)
        assert n <= 63, n
        return f"s_waitcnt vmcnt({n})"

C_S, C_V, C_DS, C_DMA, C_ST = 4, 4, 8, 8, 8
def S(x): return (x, None, C_S)
def V(x): return (x, None, C_V)
def D(x): return (x, None, C_DS)
EXP = ""; XFL = "nt"; WFL = ""

def mfma(acc, t, s, bf, first):
    k, b = wreg(s, t)
    d = rng("v", acc + 4 * t, 4)
    c = rng("v", BIAS + 4 * t, 4) if first else d
    return f"v_mfma_f32_16x16x32_bf16 {d}, {rng(k, b, 4)}, {rng('v', bf, 4)}, {c}"

def bread(bf, row, b, ks):
    off = row * XROW + (1 - b) * 224 + ks * 64
    assert off < 65536
    return D(f"ds_read_b128 {rng('v', bf, 4)}, v{V_LDS} offset:{off}")

def rowreads(buf, row):
    return [bread(buf + 4 * (b * 3 + ks), row, b, ks) for b in range(2) for ks in range(3)]

def trreads(s):
    L = []
    slot = s % NSLOT
    for t in range(6):
        j, tb = t >> 1, t & 1
        k, b = wreg(s, t)
        for h in range(2):
            off = slot * WSLOT + h * 768 + j * 64 + tb * 8
            L.append(D(f"ds_read_b64_tr_b16 {rng(k, b + 2 * h, 2)}, v{V_TR} offset:{off}"))
    return L

def wdma(s):
    slot = s % NSLOT
    tap, ks = divmod(s, 3)
    a, b = tap >> 1, tap & 1
    goff = (2 * a * 4 + 2 * b) * 18432 + ks * 6144
    tag = f"w{s}"
    def ld(v, off):
        o = f" offset:{off}" if off else ""
        return (f"buffer_load_dwordx4 v{v}, s[{S_W}:{S_W+3}], s{S_T} offen{o} {WFL} lds".replace("  ", " "), tag, C_DMA)
    return [
        S(f"s_add_u32 m0, s{S_WL}, {slot * WSLOT}"),
        S(f"s_add_u32 s{S_T}, s{S_WG}, {goff}"),
        ld(V_WA, 0), ld(V_WB, 1024), ld(V_WA1, 2048),
        S(f"s_add_u32 m0, s{S_WL}, {slot * WSLOT + 3080}"),
        S("s_nop 0"),
        ld(V_WA1, 0), ld(V_WB1, 1024), ld(V_WA2, 2048),
    ]

def xdma(rho):
    tag = f"x{rho}"
    L = []
    chk = rho in (0, 13, 14)
    if chk:
        L.append(S(f"s_add_u32 s{S_T2}, s{S_XR}, {rho}"))
        L.append(S(f"s_cmp_lt_u32 s{S_T2}, 224"))
        L.append(S(f"s_cselect_b32 s{S_X+2}, s{S_XSZ}, 0"))
    L.append(S(f"s_add_u32 m0, s{S_XL}, {rho * XROW}"))
    L.append(S(f"s_add_u32 s{S_T2}, s{S_XG}, {rho * 43008}"))
    L.append((f"buffer_load_dwordx4 v{V_X0}, s[{S_X}:{S_X+3}], s{S_T2} offen {XFL} lds".replace("  ", " "), tag, C_DMA))
    if chk:
        L.append(S(f"s_mov_b32 s{S_X+2}, s{S_XSZ}"))
    return L

def cvts(acc, j):
    o = OUTP + 4 * j
    t0, t1 = acc + 8 * j, acc + 8 * j + 4
    return [V(f"v_cvt_pk_bf16_f32 v{o}, v{t0}, v{t0+1}"), V(f"v_cvt_pk_bf16_f32 v{o+1}, v{t0+2}, v{t0+3}"),
            V(f"v_cvt_pk_bf16_f32 v{o+2}, v{t1}, v{t1+1}"), V(f"v_cvt_pk_bf16_f32 v{o+3}, v{t1+2}, v{t1+3}")]
def store(j, sf):
    o = OUTP + 4 * j
    return (f"buffer_store_dwordx4 {rng('v', o, 4)}, v{V_OUT}, s[{S_O}:{S_O+3}], s{S_OUT} offen offset:{64*j} {sf}".rstrip(), "st", C_ST)
def outadv():
    return S(f"s_add_u32 s{S_OUT}, s{S_OUT}, {2*448*192}")
def epilogue(acc, sf):
    L = []
    for j in range(3):
        L += cvts(acc, j) + [store(j, sf)]
    L.append(outadv())
    if "nost" in EXP: L = [x for x in L if x[1] != "st"]
    return L

def emit(P, vm, item):
    txt, tag = item[0], item[1]
    P(txt)
    if tag is not None and vm is not None:
        vm.add(tag)

def pack(fillers, budget=8):
    out = []; cur = []; c = 0
    for it in fillers:
        if cur and c + it[2] > budget:
            out.append(cur); cur = []; c = 0
        cur.append(it); c += it[2]
    if cur: out.append(cur)
    return out

def interleave(P, vm, mfmas, fillers, start=0, end=None, spread=True):
    n = len(mfmas)
    if end is None: end = n
    bundles = pack(fillers)
    gaps = end - start
    if len(bundles) > gaps:
        nb = []
        per = len(bundles) / gaps
        for g in range(gaps):
            lo, hi = int(round(g * per)), int(round((g + 1) * per))
            nb.append([x for b in bundles[lo:hi] for x in b])
        bundles = nb
        pos = list(range(start, end))
    elif spread:
        pos = [start + (i * gaps) // len(bundles) for i in range(len(bundles))] if bundles else []
    else:
        pos = list(range(start, start + len(bundles)))
    at = dict(zip(pos, bundles))
    for i, m in enumerate(mfmas):
        P(m)
        for it in at.get(i, []):
            emit(P, vm, it)

def placed(P, vm, mfmas, at):
    assert max(at.keys(), default=0) < len(mfmas), (max(at.keys()), len(mfmas))
    for i, m in enumerate(mfmas):
        P(m)
        for it in at.get(i, []):
            emit(P, vm, it)

def mix(a, b):
    out = []; i = j = 0
    while i < len(a) or j < len(b):
        if j >= len(b) or (i < len(a) and i * len(b) <= j * len(a)):
            out.append(a[i]); i += 1
        else:
            out.append(b[j]); j += 1
    return out

COARSE = {0: 0, 1: 1, 2: 2, 3: 3, 14: 7, 15: 4, 17: 5, 18: 6}
def stamp(P, args, idx):
    if args.stamps in (1, 3):
        if idx in COARSE: i = COARSE[idx]; P(f"s_memrealtime s[{S_STAMP+2*i}:{S_STAMP+2*i+1}]")
    elif args.stamps == 4:
        P(f"s_memtime s[{S_STAMP+2*idx}:{S_STAMP+2*idx+1}]")
    elif args.stamps == 5:
        P(f"s_memrealtime s[{S_STAMP+2*idx}:{S_STAMP+2*idx+1}]")

def gen(args):
    G = args.G
    sf = args.store_flags
    if args.probe: args.stamps = 5
    global EXP, XFL, WFL
    EXP = args.exp; XFL = args.xflags; WFL = args.wflags
    P = Prog()
    hdr = f"""; Transposed conv 4x4 stride 2, x(1,224,224,96) bf16 -> out(1,448,448,96) bf16, gfx950.
; One workgroup = 16-pixel-wide strip x 12/13 input rows; wave = output phase (py, px).
; Each wave keeps the 4 taps of its phase (384 x 96 bf16) in 288 registers and streams pixel rows from LDS.
; @launch grid=(256,1,1) block=(256,1,1) lds={LDS_BYTES}
.amdgcn_target "amdgcn-amd-amdhsa--gfx950"
.text
.globl {NAME}
.p2align 8
.type {NAME},@function
{NAME}:
"""
    stamp(P, args, 0)
    P("s_load_dwordx4 s[4:7], s[0:1], 0")
    P("s_load_dwordx4 s[24:27], s[0:1], 16")
    if args.stamps and not args.probe:
        P(f"s_load_dwordx2 s[58:59], s[0:1], {32 if args.stamps == 3 else 40}")
    P("s_and_b32 s3, s2, 7")
    P("s_lshr_b32 s45, s2, 3")
    P("s_and_b32 s46, s3, 1")
    P("s_sub_u32 s46, 32, s46")
    P("s_mul_i32 s3, s3, 63")
    P("s_add_u32 s3, s3, 1")
    P("s_lshr_b32 s3, s3, 1")
    P("s_add_u32 s3, s3, s45")
    P("s_cmp_ge_u32 s45, s46")
    P("s_cbranch_scc1 L_end")
    l = V_LANE
    P(f"v_lshrrev_b32 v{V_T}, 6, v0")
    P(f"v_and_b32 v{l}, 63, v0")
    P(f"s_mul_i32 s{S_STRIP}, s3, 3641")
    P(f"v_readfirstlane_b32 s{S_WAVE}, v{V_T}")
    P(f"s_lshr_b32 s{S_STRIP}, s{S_STRIP}, 16")
    P(f"s_mul_i32 s46, s{S_STRIP}, 18")
    P("s_sub_u32 s46, s3, s46")
    P(f"s_mul_i32 s{S_R0}, s46, 12")
    P("s_min_u32 s47, s46, 8")
    P(f"s_add_u32 s{S_R0}, s{S_R0}, s47")
    P(f"s_and_b32 s{S_PX}, s{S_WAVE}, 1")
    P(f"s_lshr_b32 s{S_PY}, s{S_WAVE}, 1")
    P("s_cmp_lt_u32 s46, 8")
    P(f"s_cselect_b32 s{S_NG}, 13, 12")
    if args.codepf:
        P("s_getpc_b64 s[50:51]")
        P("L_pc:")
        P(f"s_lshl_b32 s52, s45, 2")
        P(f"s_add_u32 s52, s52, s{S_WAVE}")
        P(f"s_mul_i32 s52, s52, {128 * args.codepf}")
        P(f"v_lshlrev_b32 v{V_D+2}, 7, v{l}")
        P(f"v_add_u32 v{V_D+2}, s52, v{V_D+2}")
        P(f"v_min_u32 v{V_D+2}, L_end-L_pc-4, v{V_D+2}")
        P(f"v_cmp_gt_u32 vcc, {args.codepf}, v{l}")
        P(f"s_and_saveexec_b64 s[54:55], vcc")
        P(f"global_load_dword v{V_D+3}, v{V_D+2}, s[50:51]")
        P(f"s_mov_b64 exec, s[54:55]")
    P(f"s_lshl_b32 s47, s45, 2")
    P(f"s_add_u32 s47, s47, s{S_WAVE}")
    P("s_mul_i32 s47, s47, 2304")
    P(f"v_lshlrev_b32 v{V_T+3}, 7, v{l}")
    P(f"v_add_u32 v{V_T+3}, s47, v{V_T+3}")
    P(f"v_cmp_gt_u32 vcc, 18, v{l}")
    P(f"v_mov_b32 v{V_T+5}, 0x80000000")
    P(f"v_lshrrev_b32 v{V_T}, 4, v{l}")
    P(f"v_cndmask_b32 v{V_T+3}, v{V_T+5}, v{V_T+3}, vcc")
    P(f"v_lshlrev_b32 v{V_BOFF}, 4, v{V_T}")
    P(f"v_lshlrev_b32 v{V_WA}, 4, v{l}")
    P(f"v_lshrrev_b32 v{V_T+2}, 5, v{l}")
    P(f"v_mul_u32_u24 v{V_T+2}, 1536, v{V_T+2}")
    P(f"v_add_u32 v{V_WA1}, 1536, v{V_WA}")
    P(f"v_add_u32 v{V_WB}, v{V_WA}, v{V_T+2}")
    P(f"v_add_u32 v{V_WA2}, 3072, v{V_WA}")
    P(f"v_add_u32 v{V_WB1}, 1536, v{V_WB}")
    P(f"s_sub_u32 s46, 1, s{S_PY}")
    P("s_lshl_b32 s46, s46, 2")
    P(f"s_sub_u32 s47, 1, s{S_PX}")
    P("s_add_u32 s46, s46, s47")
    P(f"s_mul_i32 s{S_WG}, s46, 18432")
    P(f"s_mul_i32 s{S_WL}, s{S_WAVE}, {WPH}")
    P(f"s_add_u32 s{S_WL}, s{S_WL}, {WB}")
    P(f"s_lshl_b32 s46, s{S_WAVE}, 6")
    P(f"s_lshl_b32 s{S_XL}, s{S_WAVE}, 10")
    P(f"s_lshl_b32 s47, s{S_STRIP}, 4")
    P("s_sub_u32 s47, s47, 1")
    t = V_T + 6
    P(f"v_add_u32 v{t}, s46, v{l}")
    P(f"v_mul_u32_u24 v{t+1}, 4682, v{t}")
    P(f"v_lshrrev_b32 v{t+1}, 16, v{t+1}")
    P(f"v_mul_u32_u24 v{t+2}, 14, v{t+1}")
    P(f"v_sub_u32 v{t+2}, v{t}, v{t+2}")
    P(f"v_add_u32 v{t+3}, s47, v{t+1}")
    P(f"v_cmp_gt_u32 vcc, 12, v{t+2}")
    P(f"v_mul_i32_i24 v{t+4}, 192, v{t+3}")
    P(f"v_lshl_add_u32 v{t+4}, v{t+2}, 4, v{t+4}")
    P(f"v_cndmask_b32 v{t+4}, v{V_T+5}, v{t+4}, vcc")
    P(f"v_cmp_gt_u32 vcc, 18, v{t+1}")
    P(f"s_sub_u32 s{S_XR}, s{S_R0}, 1")
    P(f"s_mul_i32 s{S_XG}, s{S_XR}, 43008")
    P(f"v_cndmask_b32 v{t+4}, v{V_T+5}, v{t+4}, vcc")
    P(f"v_cmp_gt_u32 vcc, 224, v{t+3}")
    P(f"s_mov_b32 s{S_XSZ}, 9633792")
    P(f"s_nop 0")
    P(f"v_cndmask_b32 v{V_X0}, v{V_T+5}, v{t+4}, vcc")
    P("s_waitcnt lgkmcnt(0)")
    stamp(P, args, 1)
    for (r, lo, sz) in ((S_W, 6, 294912), (S_X, 4, 9633792), (S_B, 24, 192), (S_O, 26, 38535168)):
        P(f"s_mov_b32 s{r}, s{lo}")
        P(f"s_mov_b32 s{r+1}, s{lo+1}")
        P(f"s_mov_b32 s{r+2}, {sz}")
        P(f"s_mov_b32 s{r+3}, 0x20000")
        if r == S_W and args.warm:
            P(f"buffer_load_dword v{V_D}, v{V_T+3}, s[{S_W}:{S_W+3}], 0 offen")
    vm = VM((["code"] if args.codepf else []) + (["warm"] if args.warm else []))

    def late_setup():
        q, p = V_T, V_T + 1
        L = []
        A = L.append
        A(f"v_and_b32 v{p}, 15, v{l}")
        A(f"v_add_u32 v{V_T+2}, s{S_PX}, v{p}")
        A(f"v_mul_u32_u24 v{V_T+2}, 224, v{V_T+2}")
        A(f"v_lshl_add_u32 v{V_T+2}, v{q}, 4, v{V_T+2}")
        A(f"s_mul_i32 s46, s{S_PY}, {XROW}")
        A(f"v_add_u32 v{V_LDS}, s46, v{V_T+2}")
        A(f"v_mul_u32_u24 v{V_T+2}, 384, v{p}")
        A(f"v_lshl_add_u32 v{V_T+2}, v{q}, 4, v{V_T+2}")
        A(f"s_mul_i32 s46, s{S_PX}, 192")
        A(f"v_add_u32 v{V_OUT}, s46, v{V_T+2}")
        A(f"s_lshl_b32 s46, s{S_R0}, 1")
        A(f"s_add_u32 s46, s46, s{S_PY}")
        A("s_mul_i32 s46, s46, 448")
        A(f"s_lshl_b32 s47, s{S_STRIP}, 5")
        A("s_add_u32 s46, s46, s47")
        A(f"s_mul_i32 s{S_OUT}, s46, 192")
        A(f"v_and_b32 v{V_T+2}, 1, v{q}")
        A(f"v_mul_u32_u24 v{V_T+2}, 3080, v{V_T+2}")
        A(f"v_lshrrev_b32 v{V_T+4}, 1, v{q}")
        A(f"v_mul_u32_u24 v{V_T+4}, 1536, v{V_T+4}")
        A(f"v_add_u32 v{V_T+2}, v{V_T+2}, v{V_T+4}")
        A(f"v_bfe_u32 v{V_T+4}, v{l}, 2, 2")
        A(f"v_mul_u32_u24 v{V_T+4}, 192, v{V_T+4}")
        A(f"v_add_u32 v{V_T+2}, v{V_T+2}, v{V_T+4}")
        A(f"v_and_b32 v{V_T+4}, 3, v{l}")
        A(f"v_lshl_add_u32 v{V_T+2}, v{V_T+4}, 4, v{V_T+2}")
        A(f"v_add_u32 v{V_TR}, s{S_WL}, v{V_T+2}")
        return L

    PB, QB = BFR, BFR + 24
    def bfr(s, g):
        return BFR + 4 * (((s + 1) & 1) * G + g)
    assert 2 * G * 4 <= 48 and 4 * G <= 24
    X = lambda rows: [f"x{r}" for r in rows]
    first = list(range(1, G + 2)) + [0]
    rest = list(range(G + 2, NXROWS))
    xs = {s: [] for s in range(13)}
    lo = args.xlate
    per = args.xper
    for i, r in enumerate(rest):
        xs[min(12, lo + i // per)].append(r)

    def biasloads():
        for j in range(3):
            P(f"buffer_load_dwordx4 {rng('v', OUTP+4*j, 4)}, v{V_BOFF}, s[{S_B}:{S_B+3}], 0 offen offset:{64*j}")
            vm.add("bias")
    for it in wdma(0): emit(P, vm, it)
    if args.w1first:
        for it in wdma(1): emit(P, vm, it)
    for r in first:
        for it in xdma(r): emit(P, vm, it)
    biasloads()
    if not args.w1first:
        for it in wdma(1): emit(P, vm, it)
    for i in late_setup(): P(i)
    stamp(P, args, 2)

    NM = 6 * G
    for s in range(13):
        mf = []
        if s >= 1:
            P("s_waitcnt lgkmcnt(0)")
            for g in range(G):
                for t in range(6):
                    mf.append(mfma(ACC[g], t, s - 1, bfr(s - 1, g), s - 1 == 0))
        if s == 0:
            P(vm.wait([f"w0"] + X(first)))
            P("s_barrier")
            stamp(P, args, 3)
            for it in [bread(bfr(0, g), g + 1, 0, 0) for g in range(G)] + trreads(0): emit(P, vm, it)
            for it in wdma(2) + wdma(3): emit(P, vm, it)
            P(vm.wait(["bias"]))
            for j in range(3):
                for i in range(4):
                    P(f"v_lshlrev_b32 v{BIAS+8*j+2*i}, 16, v{OUTP+4*j+i}")
                    P(f"v_and_b32 v{BIAS+8*j+2*i+1}, 0xffff0000, v{OUTP+4*j+i}")
        elif s <= 11:
            tap, ks = divmod(s, 3)
            a, b = tap >> 1, tap & 1
            breads = [bread(bfr(s, g), g + 1 - a, b, ks) for g in range(G)]
            trs = trreads(s)
            dm = wdma(s + 3) if s + 3 <= 11 else []
            xd = []
            for r in xs[s]: xd += xdma(r)
            if "nodma" in EXP: dm = []
            at = {}
            def put(g, items):
                at.setdefault(g, []).extend(items)
            wpos = args.wwait
            order = []
            reads = breads + trs
            dmas = [x for x in dm if x[1] is not None]
            if dm:
                dgroups = [dm[0:3], [dm[3]], [dm[4], dm[5]], [dm[7]], [dm[8]], [dm[9]]]
            else:
                dgroups = []
            ri = 0
            dpos = [int(x) for x in args.dpos.split(",")]
            xq = pack(xd, budget=12) if xd else []
            if dgroups and xq:
                k = len(xq)
                span = NM - k - 2
                dpos = [2 + (i * (span - 1)) // 5 for i in range(6)]
            dmap = dict(zip(dpos, dgroups))
            last_w = max(dmap.keys()) if dmap else -1
            free = [g for g in range(NM) if g not in dmap]
            if xq:
                if dmap:
                    cand = [g for g in free if g > last_w]
                    xpos = cand[:len(xq)] if len(cand) >= len(xq) else None
                    assert xpos is not None, (s, cand, len(xq))
                else:
                    n = len(xq)
                    cand = free[G + 1:]
                    xpos = [cand[(i * (len(cand) - 1)) // max(1, n - 1)] for i in range(n)] if n > 1 else [cand[0]]
                for g, b in zip(xpos, xq): put(g, b)
                free = [g for g in free if g not in xpos]
            for it in reads:
                g = free[ri]
                if ri == G:
                    put(g, [(vm_wait_placeholder(s), None, 0)])
                put(g, [it]); ri += 1
            for g, b in dmap.items(): put(g, b)
            for i, m in enumerate(mf):
                P(m)
                for it in at.get(i, []):
                    if isinstance(it[0], tuple):
                        P(vm.wait([f"w{s}"]))
                    else:
                        emit(P, vm, it)
            stamp(P, args, 3 + s)
        else:
            xd = []
            for r in xs[12]: xd += xdma(r)
            pre = rowreads(QB, G)
            interleave(P, vm, mf[:9], xd + pre)
            cv = cvts(ACC[0], 0) + cvts(ACC[0], 1) + cvts(ACC[0], 2)
            interleave(P, vm, mf[9:], cv)
    P(vm.wait(X(range(NXROWS))))
    P("s_barrier")
    P("L_main:")
    stamp(P, args, 15)

    def group(vm, accp, old, new, row, extra_first, epis, tail=[], pre_st=[]):
        mf = [mfma(accp, t, s, old + 4 * (s - 6), s == 6) for s in range(6, 12) for t in range(6)]
        e = []
        for x in epis: e += x
        n1 = len(e) if len(epis) == 1 else (len(e) + 1) // 2
        if pre_st:
            ef = list(extra_first)
            first_f = []
            for i in range(max(len(ef), len(pre_st))):
                if i < len(ef): first_f.append(ef[i])
                if i < len(pre_st): first_f.append(pre_st[i])
            interleave(P, vm, mf[:12], first_f)
            interleave(P, vm, mf[12:], e[:n1])
        else:
            interleave(P, vm, mf[:6], list(extra_first))
            interleave(P, vm, mf[6:], e[:n1])
        mf = [mfma(accp, t, s, new + 4 * s, False) for s in range(0, 6) for t in range(6)]
        P("s_waitcnt lgkmcnt(0)")
        reads = rowreads(old, row + 2)
        interleave(P, vm, mf, mix(reads, e[n1:]) + list(tail))

    P("s_waitcnt lgkmcnt(0)")
    E = lambda a: epilogue(a, sf)
    st0 = [store(0, sf), store(1, sf), store(2, sf), outadv()]
    if "nost" in EXP: st0 = [outadv()]
    if G == 5:
        group(vm, ACC[0], QB, PB, G, rowreads(PB, G + 1), [E(ACC[1]), E(ACC[2])], pre_st=st0)
        stamp(P, args, 16)
        group(vm, ACC[1], PB, QB, G + 1, [], [E(ACC[3]), E(ACC[4])])
        group(vm, ACC[2], QB, PB, G + 2, [], [E(ACC[0]), E(ACC[1])],
              tail=[S(f"s_sub_u32 s{S_CNT}, s{S_NG}, {G+3}"), V(f"v_add_u32 v{V_LDS}, {(G+3)*XROW}, v{V_LDS}")])
        A0, A1 = ACC[0], ACC[2]
    elif G == 4:
        group(vm, ACC[0], QB, PB, G, rowreads(PB, G + 1), [E(ACC[1]), E(ACC[2])], pre_st=st0)
        stamp(P, args, 16)
        group(vm, ACC[1], PB, QB, G + 1, [], [E(ACC[3]), E(ACC[0])])
        group(vm, ACC[2], QB, PB, G + 2, [], [E(ACC[1])],
              tail=[S(f"s_sub_u32 s{S_CNT}, s{S_NG}, {G+3}"), V(f"v_add_u32 v{V_LDS}, {(G+3)*XROW}, v{V_LDS}")])
        A0, A1 = ACC[0], ACC[2]
    P("L_loop:")
    dec = [S(f"s_sub_u32 s{S_CNT}, s{S_CNT}, 1"), S(f"s_cmp_eq_u32 s{S_CNT}, 0")]
    group(None, A0, PB, QB, 0, [], [E(A1)], tail=dec)
    P("s_cbranch_scc1 L_fin1")
    group(None, A1, QB, PB, 1, [], [E(A0)], tail=[V(f"v_add_u32 v{V_LDS}, {2*XROW}, v{V_LDS}")] + dec)
    P("s_cbranch_scc0 L_loop")
    P("s_nop 7")
    for it in E(A1): emit(P, None, it)
    P("s_branch L_done")
    P("L_fin1:")
    P("s_nop 7")
    for it in E(A0): emit(P, None, it)
    P("L_done:")
    T = V_D
    if args.probe:
        a, b, K, wg = [int(x) for x in args.probe.split(",")]
        stamp(P, args, 17)
        P("s_waitcnt vmcnt(0)")
        stamp(P, args, 18)
        P("s_waitcnt lgkmcnt(0)")
        P(f"s_cmp_eq_u32 s2, {wg}")
        P("s_cbranch_scc0 L_end")
        P(f"s_sub_u32 s46, s{S_STAMP+2*b}, s{S_STAMP+2*a}")
        P(f"s_mul_i32 s46, s46, {K}")
        P(f"s_min_u32 s46, s46, 20000")
        P(f"s_add_u32 s46, s46, s{S_STAMP+2*18}")
        P("L_spin:")
        P("s_memrealtime s[50:51]")
        P("s_waitcnt lgkmcnt(0)")
        P("s_sub_u32 s53, s46, s50")
        P("s_cmp_gt_i32 s53, 0")
        P("s_cbranch_scc1 L_spin")
    elif args.stamps == 3:
        stamp(P, args, 17)
        P("s_waitcnt vmcnt(0)")
        stamp(P, args, 18)
        P("s_waitcnt lgkmcnt(0)")
        P(f"s_lshl_b32 s46, s2, 2"); P(f"s_add_u32 s46, s46, s{S_WAVE}")
        P("s_mov_b32 s47, 0")
        P("s_cmp_eq_u32 s46, 0")
        P("s_cbranch_scc1 L_wr")
        P("s_mov_b32 s47, 32")
        P("s_cmp_eq_u32 s46, 406")
        P("s_cbranch_scc0 L_end")
        P("L_wr:")
        P(f"v_mov_b32 v{T}, s47")
        P(f"v_cmp_eq_u32 vcc, 0, v{V_LANE}")
        P("s_and_saveexec_b64 s[48:49], vcc")
        for i in range(8):
            if i == 0:
                P(f"v_mov_b32 v{T+2}, s{S_STAMP}")
            else:
                P(f"s_sub_u32 s46, s{S_STAMP+2*i}, s{S_STAMP}")
                P(f"v_mov_b32 v{T+2}, s46")
            P(f"global_store_dword v{T}, v{T+2}, s[58:59] offset:{4*i}")
            P("s_nop 1")
    elif args.stamps:
        stamp(P, args, 17)
        P("s_waitcnt vmcnt(0)")
        stamp(P, args, 18)
        P("s_waitcnt lgkmcnt(0)")
        P(f"s_lshl_b32 s46, s2, 2"); P(f"s_add_u32 s46, s46, s{S_WAVE}"); P(f"s_lshl_b32 s46, s46, {8 if args.stamps >= 4 else 6}")
        P(f"v_mov_b32 v{T}, s46")
        P(f"v_cmp_eq_u32 vcc, 0, v{V_LANE}")
        P("s_and_saveexec_b64 s[48:49], vcc")
        for i in range(19 if args.stamps >= 4 else 7):
            P(f"v_mov_b32 v{T+2}, s{S_STAMP+2*i}"); P(f"v_mov_b32 v{T+3}, s{S_STAMP+2*i+1}")
            P(f"global_store_dwordx2 v{T}, v[{T+2}:{T+3}], s[58:59] offset:{8*i}") if (T + 2) % 2 == 0 else None
            P("s_nop 1")
    P("L_end:")
    P("s_endpgm")
    ftr = f"""
.section .rodata,"a"
.p2align 6
.amdhsa_kernel {NAME}
  .amdhsa_next_free_vgpr 512
  .amdhsa_next_free_sgpr 102
  .amdhsa_accum_offset 256
  .amdhsa_group_segment_fixed_size 0
  .amdhsa_kernarg_size 48
  .amdhsa_user_sgpr_count 2
  .amdhsa_user_sgpr_kernarg_segment_ptr 1
  .amdhsa_system_sgpr_workgroup_id_x 1
.end_amdhsa_kernel
"""
    return hdr + P.text() + ftr

def vm_wait_placeholder(s):
    return ("wait", s)

if __name__ == "__main__":
    ap = argparse.ArgumentParser()
    ap.add_argument("-o", default="standalone__transposed_strided__vision.s")
    ap.add_argument("--G", type=int, default=5)
    ap.add_argument("--store-flags", default="sc0 sc1")
    ap.add_argument("--stamps", type=int, default=0)
    ap.add_argument("--warm", type=int, default=1)
    ap.add_argument("--exp", default="")
    ap.add_argument("--probe", default="")
    ap.add_argument("--codepf", type=int, default=0)
    ap.add_argument("--xflags", default="nt")
    ap.add_argument("--wflags", default="")
    ap.add_argument("--w1first", type=int, default=0)
    ap.add_argument("--xlate", type=int, default=9)
    ap.add_argument("--xper", type=int, default=4)
    ap.add_argument("--wwait", type=int, default=5)
    ap.add_argument("--dpos", default="2,7,12,17,22,26")
    args = ap.parse_args()
    open(args.o, "w").write(gen(args))
```

```python
import sys, argparse

NAME = "standalone__transposed_strided__vision_kernel"

XROW = 4096
NXROWS = 26
WB = NXROWS * XROW
WSLOT = 6160
NRING = 4
WPH = WSLOT * NRING
LDS_BYTES = WB + 2 * WPH

def wreg(s, t):
    f = s * 6 + t
    if f < 64:
        return "a", 4 * f
    return "v", 224 + 4 * (f - 64)
def rng(kind, base, n):
    return f"{kind}[{base}:{base+n-1}]"
ACC = [0, 24, 48, 72, 96]
BIAS = 120
BFR = 144
OUTP = 192
V_LDS, V_OUT, V_TR, V_TR2 = 204, 205, 206, 207
V_W0, V_W1, V_W2 = 208, 209, 210
V_X0 = 211
V_BOFF = 212
V_LANE = 213
V_T = 96
V_D = 216

S_X, S_W, S_O, S_B = 8, 12, 16, 20
S_WAVE, S_PX, S_HALF, S_PY, S_STRIP, S_R0, S_NG, S_OUT, S_WG, S_T, S_WL, S_XR = 28, 29, 30, 31, 32, 33, 34, 35, 36, 37, 38, 39
S_T2, S_CNT, S_XSZ, S_XL, S_XG, S_WM, S_WM2, S_WL2 = 40, 41, 42, 43, 44, 48, 49, 56
S_STAMP = 60

class Prog:
    def __init__(self):
        self.L = []
    def __call__(self, s):
        if s is not None:
            self.L.append(s)
    def text(self):
        return "\n".join(("" if l.endswith(":") else "    ") + l for l in self.L) + "\n"

class VM:
    def __init__(self, ops=None):
        self.ops = list(ops) if ops else []
    def add(self, tag):
        self.ops.append(tag)
    def wait(self, tags):
        idx = [i for i, t in enumerate(self.ops) if t in tags]
        if not idx: return None
        n = len(self.ops) - 1 - max(idx)
        assert n <= 63, n
        return f"s_waitcnt vmcnt({n})"

C_S, C_V, C_DS, C_DMA, C_ST = 4, 4, 8, 8, 8
def S(x): return (x, None, C_S)
def V(x): return (x, None, C_V)
def D(x): return (x, None, C_DS)
EXP = ""; XFL = "nt"; WFL = ""; GG = 5

def slot_of(c):
    nb = ((12 - GG) * XROW) // WSLOT
    if c < NRING: return ("ring", c)
    if c < NRING + nb: return ("bor", c - NRING)
    return ("ring", c - NRING - nb)

def mfma(acc, t, s, bf, first):
    k, b = wreg(s, t)
    d = rng("v", acc + 4 * t, 4)
    c = rng("v", BIAS + 4 * t, 4) if first else d
    return f"v_mfma_f32_16x16x32_bf16 {d}, {rng(k, b, 4)}, {rng('v', bf, 4)}, {c}"

def bread(bf, row, b, ks):
    off = row * XROW + (1 - b) * 224 + ks * 64
    assert off < 65536
    return D(f"ds_read_b128 {rng('v', bf, 4)}, v{V_LDS} offset:{off}")

def rowreads(buf, row):
    return [bread(buf + 4 * (b * 3 + ks), row, b, ks) for b in range(2) for ks in range(3)]

def trreads(c):
    L = []
    kind, slot = slot_of(c)
    va = V_TR if kind == "ring" else V_TR2
    for t in range(6):
        j, tb = t >> 1, t & 1
        k, b = wreg(c, t)
        for h in range(2):
            off = slot * WSLOT + h * 768 + j * 64 + tb * 8
            L.append(D(f"ds_read_b64_tr_b16 {rng(k, b + 2 * h, 2)}, v{va} offset:{off}"))
    return L

def wdma(c):
    kind, slot = slot_of(c)
    sm = S_WM if kind == "ring" else S_WM2
    tap, ks = divmod(c, 3)
    a, b = tap >> 1, tap & 1
    goff = (2 * a * 4 + 2 * b) * 18432 + ks * 6144
    tag = f"w{c}"
    def ld(v, off):
        o = f" offset:{off}" if off else ""
        return (f"buffer_load_dwordx4 v{v}, s[{S_W}:{S_W+3}], s{S_T} offen{o} {WFL} lds".replace("  ", " "), tag, C_DMA)
    return [
        S(f"s_add_u32 m0, s{sm}, {slot * WSLOT}"),
        S(f"s_add_u32 s{S_T}, s{S_WG}, {goff}"),
        ld(V_W0, 0), ld(V_W1, 1024), ld(V_W2, 2048),
    ]

def xdma(rho):
    tag = f"x{rho}"
    L = []
    chk = rho in (0, 24, 25)
    if chk:
        L.append(S(f"s_add_u32 s{S_T2}, s{S_XR}, {rho}"))
        L.append(S(f"s_cmp_lt_u32 s{S_T2}, 224"))
        L.append(S(f"s_cselect_b32 s{S_X+2}, s{S_XSZ}, 0"))
    L.append(S(f"s_add_u32 m0, s{S_XL}, {rho * XROW}"))
    L.append(S(f"s_add_u32 s{S_T2}, s{S_XG}, {rho * 43008}"))
    L.append((f"buffer_load_dwordx4 v{V_X0}, s[{S_X}:{S_X+3}], s{S_T2} offen {XFL} lds".replace("  ", " "), tag, C_DMA))
    if chk:
        L.append(S(f"s_mov_b32 s{S_X+2}, s{S_XSZ}"))
    return L

def cvts(acc, j):
    o = OUTP + 4 * j
    t0, t1 = acc + 8 * j, acc + 8 * j + 4
    return [V(f"v_cvt_pk_bf16_f32 v{o}, v{t0}, v{t0+1}"), V(f"v_cvt_pk_bf16_f32 v{o+1}, v{t0+2}, v{t0+3}"),
            V(f"v_cvt_pk_bf16_f32 v{o+2}, v{t1}, v{t1+1}"), V(f"v_cvt_pk_bf16_f32 v{o+3}, v{t1+2}, v{t1+3}")]
def store(j, sf):
    o = OUTP + 4 * j
    return (f"buffer_store_dwordx4 {rng('v', o, 4)}, v{V_OUT}, s[{S_O}:{S_O+3}], s{S_OUT} offen offset:{64*j} {sf}".rstrip(), "st", C_ST)
def outadv():
    return S(f"s_add_u32 s{S_OUT}, s{S_OUT}, {2*448*192}")
def epilogue(acc, sf):
    L = []
    for j in range(3):
        L += cvts(acc, j) + [store(j, sf)]
    L.append(outadv())
    if "nost" in EXP: L = [x for x in L if x[1] != "st"]
    return L

def emit(P, vm, item):
    txt, tag = item[0], item[1]
    P(txt)
    if tag is not None and vm is not None:
        vm.add(tag)

def pack(fillers, budget=8):
    out = []; cur = []; c = 0
    for it in fillers:
        if cur and c + it[2] > budget:
            out.append(cur); cur = []; c = 0
        cur.append(it); c += it[2]
    if cur: out.append(cur)
    return out

def spread_bundles(P, vm, mfmas, bundles, start=0, end=None):
    n = len(mfmas)
    if end is None: end = n
    gaps = end - start
    at = {}
    for i, b in enumerate(bundles):
        g = start + (i * gaps) // len(bundles)
        at.setdefault(g, []).extend(b)
    for i, m in enumerate(mfmas):
        P(m)
        for it in at.get(i, []):
            emit(P, vm, it)

def interleave(P, vm, mfmas, fillers, start=0, end=None):
    bundles = pack(fillers)
    if not bundles:
        for m in mfmas: P(m)
        return
    spread_bundles(P, vm, mfmas, bundles, start, end)

def mix(a, b):
    out = []; i = j = 0
    while i < len(a) or j < len(b):
        if j >= len(b) or (i < len(a) and i * len(b) <= j * len(a)):
            out.append(a[i]); i += 1
        else:
            out.append(b[j]); j += 1
    return out

def dma_bundles(items):
    out = []; cur = []
    for it in items:
        cur.append(it)
        if it[1] is not None:
            out.append(cur); cur = []
    if cur:
        out[-1] = out[-1] + cur
    return out

COARSE = {0: 0, 1: 1, 2: 2, 3: 3, 14: 7, 15: 4, 17: 5, 18: 6}
def stamp(P, args, idx):
    if args.stamps in (1, 3):
        if idx in COARSE: i = COARSE[idx]; P(f"s_memrealtime s[{S_STAMP+2*i}:{S_STAMP+2*i+1}]")
    elif args.stamps == 4:
        P(f"s_memtime s[{S_STAMP+2*idx}:{S_STAMP+2*idx+1}]")
    elif args.stamps == 5:
        P(f"s_memrealtime s[{S_STAMP+2*idx}:{S_STAMP+2*idx+1}]")

def gen(args):
    G = args.G
    sf = args.store_flags
    if args.probe: args.stamps = 5
    global EXP, XFL, WFL, GG
    EXP = args.exp; XFL = args.xflags; WFL = args.wflags; GG = G
    P = Prog()
    hdr = f"""; Transposed conv 4x4 stride 2, x(1,224,224,96) bf16 -> out(1,448,448,96) bf16, gfx950.
; One workgroup = (16-pixel-wide strip x 24/25 input rows, output row parity py); wave = (px, half).
; Each wave keeps the 4 taps of its phase (384 x 96 bf16) in 288 registers and streams pixel rows from LDS.
; @launch grid=(256,1,1) block=(256,1,1) lds={LDS_BYTES}
.amdgcn_target "amdgcn-amd-amdhsa--gfx950"
.text
.globl {NAME}
.p2align 8
.type {NAME},@function
{NAME}:
"""
    stamp(P, args, 0)
    P("s_load_dwordx4 s[4:7], s[0:1], 0")
    P("s_load_dwordx4 s[24:27], s[0:1], 16")
    if args.stamps and not args.probe:
        P(f"s_load_dwordx2 s[58:59], s[0:1], {32 if args.stamps == 3 else 40}")
    P("s_and_b32 s3, s2, 7")
    P("s_lshr_b32 s45, s2, 3")
    P(f"s_and_b32 s{S_PY}, s45, 1")
    P("s_lshr_b32 s46, s45, 1")
    P("s_lshl_b32 s3, s3, 4")
    P("s_add_u32 s3, s3, s46")
    P("s_cmp_ge_u32 s2, 256")
    P("s_cbranch_scc1 L_end")
    P("s_cmp_ge_u32 s3, 126")
    P("s_cbranch_scc1 L_end")
    l = V_LANE
    P(f"v_lshrrev_b32 v{V_T}, 6, v0")
    P(f"v_and_b32 v{l}, 63, v0")
    P(f"s_mul_i32 s{S_STRIP}, s3, 7282")
    P(f"v_readfirstlane_b32 s{S_WAVE}, v{V_T}")
    P(f"s_lshr_b32 s{S_STRIP}, s{S_STRIP}, 16")
    P(f"s_mul_i32 s46, s{S_STRIP}, 9")
    P("s_sub_u32 s46, s3, s46")
    P(f"s_mul_i32 s{S_R0}, s46, 25")
    P(f"s_and_b32 s{S_PX}, s{S_WAVE}, 1")
    P(f"s_lshr_b32 s{S_HALF}, s{S_WAVE}, 1")
    P("s_cmp_lt_u32 s46, 8")
    P(f"s_cselect_b32 s{S_NG}, 12, 11")
    P(f"s_cmp_eq_u32 s{S_HALF}, 0")
    P(f"s_cselect_b32 s{S_NG}, 13, s{S_NG}")
    P(f"s_lshl_b32 s52, s45, 2")
    P(f"s_add_u32 s52, s52, s{S_WAVE}")
    if args.codepf:
        P("s_getpc_b64 s[50:51]")
        P("L_pc:")
        P(f"s_lshl_b32 s53, s52, 7")
        P(f"v_mov_b32 v{V_D+2}, s53")
        P(f"s_cmp_lt_u32 s53, L_end-L_pc")
        P(f"s_cbranch_scc0 L_nopf")
        P(f"global_load_dword v{V_D+3}, v{V_D+2}, s[50:51]")
        P(f"L_nopf:")
    P("s_mul_i32 s47, s52, 2304")
    P(f"v_lshlrev_b32 v{V_T+3}, 7, v{l}")
    P(f"v_add_u32 v{V_T+3}, s47, v{V_T+3}")
    P(f"v_cmp_gt_u32 vcc, 18, v{l}")
    P(f"v_mov_b32 v{V_T+5}, 0x80000000")
    P(f"v_lshrrev_b32 v{V_T}, 4, v{l}")
    P(f"v_cndmask_b32 v{V_T+3}, v{V_T+5}, v{V_T+3}, vcc")
    P(f"v_lshlrev_b32 v{V_BOFF}, 4, v{V_T}")
    P(f"s_mul_i32 s46, s{S_HALF}, 1536")
    P(f"v_lshlrev_b32 v{V_W0}, 4, v{l}")
    P(f"v_lshrrev_b32 v{V_T+2}, 5, v{l}")
    P(f"v_add_u32 v{V_W0}, s46, v{V_W0}")
    P(f"v_mul_u32_u24 v{V_T+2}, 1536, v{V_T+2}")
    P(f"v_add_u32 v{V_W2}, 1536, v{V_W0}")
    P(f"v_add_u32 v{V_W1}, v{V_W0}, v{V_T+2}")
    P(f"s_sub_u32 s46, 1, s{S_PY}")
    P("s_lshl_b32 s46, s46, 2")
    P(f"s_sub_u32 s47, 1, s{S_PX}")
    P("s_add_u32 s46, s46, s47")
    P(f"s_mul_i32 s{S_WG}, s46, 18432")
    P(f"s_mul_i32 s{S_WL}, s{S_PX}, {WPH}")
    P(f"s_add_u32 s{S_WL}, s{S_WL}, {WB}")
    P(f"s_mul_i32 s46, s{S_HALF}, 3080")
    P(f"s_add_u32 s{S_WM}, s{S_WL}, s46")
    P(f"s_mul_i32 s{S_WL2}, s{S_PX}, {13 * XROW}")
    P(f"s_add_u32 s{S_WL2}, s{S_WL2}, {(G + 1) * XROW}")
    P(f"s_add_u32 s{S_WM2}, s{S_WL2}, s46")
    P(f"s_lshl_b32 s46, s{S_WAVE}, 6")
    P(f"s_lshl_b32 s{S_XL}, s{S_WAVE}, 10")
    P(f"s_lshl_b32 s47, s{S_STRIP}, 4")
    P("s_sub_u32 s47, s47, 1")
    t = V_T + 6
    P(f"v_add_u32 v{t}, s46, v{l}")
    P(f"v_mul_u32_u24 v{t+1}, 4682, v{t}")
    P(f"v_lshrrev_b32 v{t+1}, 16, v{t+1}")
    P(f"v_mul_u32_u24 v{t+2}, 14, v{t+1}")
    P(f"v_sub_u32 v{t+2}, v{t}, v{t+2}")
    P(f"v_add_u32 v{t+3}, s47, v{t+1}")
    P(f"v_cmp_gt_u32 vcc, 12, v{t+2}")
    P(f"v_mul_i32_i24 v{t+4}, 192, v{t+3}")
    P(f"v_lshl_add_u32 v{t+4}, v{t+2}, 4, v{t+4}")
    P(f"v_cndmask_b32 v{t+4}, v{V_T+5}, v{t+4}, vcc")
    P(f"v_cmp_gt_u32 vcc, 18, v{t+1}")
    P(f"s_add_u32 s{S_XR}, s{S_R0}, s{S_PY}")
    P(f"s_sub_u32 s{S_XR}, s{S_XR}, 1")
    P(f"v_cndmask_b32 v{t+4}, v{V_T+5}, v{t+4}, vcc")
    P(f"v_cmp_gt_u32 vcc, 224, v{t+3}")
    P(f"s_mul_i32 s{S_XG}, s{S_XR}, 43008")
    P(f"s_mov_b32 s{S_XSZ}, 9633792")
    P(f"v_cndmask_b32 v{V_X0}, v{V_T+5}, v{t+4}, vcc")
    P("s_waitcnt lgkmcnt(0)")
    stamp(P, args, 1)
    vm = VM(["code"] if args.codepf else [])
    def srd(r, lo, sz):
        P(f"s_mov_b32 s{r}, s{lo}")
        P(f"s_mov_b32 s{r+1}, s{lo+1}")
        P(f"s_mov_b32 s{r+2}, {sz}")
        P(f"s_mov_b32 s{r+3}, 0x20000")
    def warm():
        if args.warm:
            P(f"buffer_load_dword v{V_D}, v{V_T+3}, s[{S_W}:{S_W+3}], 0 offen")
            vm.add("warm")
    srd(S_W, 6, 294912)
    if args.warm == 1: warm()
    for it in wdma(0): emit(P, vm, it)
    srd(S_X, 4, 9633792)

    def late_setup():
        q, p = V_T, V_T + 1
        L = []
        A = L.append
        A(f"v_and_b32 v{p}, 15, v{l}")
        A(f"v_add_u32 v{V_T+2}, s{S_PX}, v{p}")
        A(f"v_mul_u32_u24 v{V_T+2}, 224, v{V_T+2}")
        A(f"v_lshl_add_u32 v{V_T+2}, v{q}, 4, v{V_T+2}")
        A(f"s_mul_i32 s46, s{S_HALF}, {13*XROW}")
        A(f"v_add_u32 v{V_LDS}, s46, v{V_T+2}")
        A(f"v_mul_u32_u24 v{V_T+2}, 384, v{p}")
        A(f"v_lshl_add_u32 v{V_T+2}, v{q}, 4, v{V_T+2}")
        A(f"s_mul_i32 s46, s{S_PX}, 192")
        A(f"v_add_u32 v{V_OUT}, s46, v{V_T+2}")
        A(f"s_mul_i32 s46, s{S_HALF}, 13")
        A(f"s_add_u32 s46, s46, s{S_R0}")
        A("s_lshl_b32 s46, s46, 1")
        A(f"s_add_u32 s46, s46, s{S_PY}")
        A("s_mul_i32 s46, s46, 448")
        A(f"s_lshl_b32 s47, s{S_STRIP}, 5")
        A("s_add_u32 s46, s46, s47")
        A(f"s_mul_i32 s{S_OUT}, s46, 192")
        A(f"v_and_b32 v{V_T+2}, 1, v{q}")
        A(f"v_mul_u32_u24 v{V_T+2}, 3080, v{V_T+2}")
        A(f"v_lshrrev_b32 v{V_T+4}, 1, v{q}")
        A(f"v_mul_u32_u24 v{V_T+4}, 1536, v{V_T+4}")
        A(f"v_add_u32 v{V_T+2}, v{V_T+2}, v{V_T+4}")
        A(f"v_bfe_u32 v{V_T+4}, v{l}, 2, 2")
        A(f"v_mul_u32_u24 v{V_T+4}, 192, v{V_T+4}")
        A(f"v_add_u32 v{V_T+2}, v{V_T+2}, v{V_T+4}")
        A(f"v_and_b32 v{V_T+4}, 3, v{l}")
        A(f"v_lshl_add_u32 v{V_T+2}, v{V_T+4}, 4, v{V_T+2}")
        A(f"v_add_u32 v{V_TR}, s{S_WL}, v{V_T+2}")
        A(f"v_add_u32 v{V_TR2}, s{S_WL2}, v{V_T+2}")
        return L

    PB, QB = BFR, BFR + 24
    def bfr(s, g):
        return BFR + 4 * (((s + 1) & 1) * G + g)
    assert 4 * G <= 24
    X = lambda rows: [f"x{r}" for r in rows]
    def pair(r): return [q for q in (r, 13 + r) if q <= 25]
    first = []
    for g in range(G): first += [1 + g, 14 + g]
    second = [0, 13]
    rsched = {int(k): [int(c) for c in v.split("+")] for k, v in (kv.split(":") for kv in args.rsched.split(","))}
    dsched = {int(k): [int(c) for c in v.split("+")] for k, v in (kv.split(":") for kv in args.dsched.split(","))}
    xsched = {int(k): [int(c) for c in v.split("+")] for k, v in (kv.split(":") for kv in args.xsched.split(","))}
    rstep = {c: s for s, v in rsched.items() for c in v}
    dstep = {c: s for s, v in dsched.items() for c in v}
    assert sorted(rstep) == list(range(12)) and sorted(list(dstep) + [0, 1]) == list(range(12))
    for c in range(12):
        assert rstep[c] <= c
        if c in dstep: assert dstep[c] < rstep[c] or (dstep[c] == 0 and rstep[c] > 0)
    for c2 in range(12):
        for c1 in range(c2):
            if slot_of(c1) == slot_of(c2): assert dstep[c2] >= rstep[c1] + 1, (c1, c2)
    xrows_rest = sorted(r for v in xsched.values() for r in v)
    assert xrows_rest == list(range(G + 1, 13)), xrows_rest
    nb = ((12 - G) * XROW) // WSLOT
    for s, v in xsched.items():
        for r in v:
            lo, hi = (r - G - 1) * XROW, (r - G) * XROW
            for b in range(nb):
                if lo < (b + 1) * WSLOT and hi > b * WSLOT:
                    assert s >= rstep[NRING + b] + 1, (r, s, b)
    bar_steps = sorted(set(rsched.keys()))
    if args.barsteps:
        bar_steps = [int(x) for x in args.barsteps.split(",")]

    def biasloads():
        for j in range(3):
            P(f"buffer_load_dwordx4 {rng('v', OUTP+4*j, 4)}, v{V_BOFF}, s[{S_B}:{S_B+3}], 0 offen offset:{64*j}")
            vm.add("bias")
    for r in first:
        for it in xdma(r): emit(P, vm, it)
    if args.warm == 2: warm()
    srd(S_B, 24, 192)
    biasloads()
    for it in wdma(1): emit(P, vm, it)
    for r in second:
        for it in xdma(r): emit(P, vm, it)
    srd(S_O, 26, 38535168)
    for i in late_setup(): P(i)
    stamp(P, args, 2)

    NM = 6 * G
    covered = set()
    for s in range(13):
        mf = []
        if s >= 1:
            P("s_waitcnt lgkmcnt(0)")
            for g in range(G):
                for t in range(6):
                    mf.append(mfma(ACC[g], t, s - 1, bfr(s - 1, g), s - 1 == 0))
        if s <= 11:
            rc = rsched.get(s, [])
            need = []
            if s in bar_steps:
                nxt = [b for b in bar_steps if b > s]
                upto = (nxt[0] if nxt else 13)
                pub = [c for c in range(12) if s <= rstep[c] < upto]
                need = [f"w{c}" for c in pub]
                covered |= set(pub)
                if s == 0: need += X(first)
                if s <= 6 and (not nxt or nxt[0] > 6): need += X(second)
            for c in rc: assert c in covered, (s, c)
            if s in bar_steps:
                if mf:
                    P(mf[0]); P(vm.wait(need)); P(mf[1]); P("s_barrier"); mf = mf[2:]
                else:
                    P(vm.wait(need)); P("s_barrier")
            if s == 0: stamp(P, args, 3)
            tap, ks = divmod(s, 3)
            a, b = tap >> 1, tap & 1
            breads = [bread(bfr(s, g), g + 1 - a, b, ks) for g in range(G)]
            trs = [x for c in rc for x in trreads(c)]
            dm = [x for c in dsched.get(s, []) for x in wdma(c)]
            xd = [x for r in xsched.get(s, []) for q in pair(r) for x in xdma(q)]
            if s == 0:
                for it in breads + trs + dm + xd: emit(P, vm, it)
                P(vm.wait(["bias"]))
                for j in range(3):
                    for i in range(4):
                        P(f"v_lshlrev_b32 v{BIAS+8*j+2*i}, 16, v{OUTP+4*j+i}")
                        P(f"v_and_b32 v{BIAS+8*j+2*i+1}, 0xffff0000, v{OUTP+4*j+i}")
            else:
                rb = [[x] for x in breads + trs]
                db = dma_bundles(dm + xd) if (dm or xd) else []
                bl = mix(rb, db) if db else rb
                end = len(mf) - (args.tailgap if len(bl) <= len(mf) - args.tailgap else 0)
                if not db: end = max(len(rb), min(end, len(rb) + len(rb) // 2)) if rb else len(mf)
                spread_bundles(P, vm, mf, bl, 0, min(end, len(mf))) if bl else [P(m) for m in mf]
                stamp(P, args, 3 + s)
        else:
            pre = rowreads(QB, G)
            interleave(P, vm, mf[:9], pre)
            cv = cvts(ACC[0], 0) + cvts(ACC[0], 1) + cvts(ACC[0], 2)
            interleave(P, vm, mf[9:], cv)
    P(vm.wait(X(range(NXROWS))))
    P("s_barrier")
    P("L_main:")
    stamp(P, args, 15)

    def group(vm, accp, old, new, row, extra_first, e1, e2, tail=[]):
        mf = [mfma(accp, t, s, old + 4 * (s - 6), s == 6) for s in range(6, 12) for t in range(6)]
        interleave(P, vm, mf[:6], list(extra_first))
        interleave(P, vm, mf[6:], e1)
        mf = [mfma(accp, t, s, new + 4 * s, False) for s in range(0, 6) for t in range(6)]
        P("s_waitcnt lgkmcnt(0)")
        reads = rowreads(old, row + 2)
        interleave(P, vm, mf, mix(reads, e2) + list(tail))

    P("s_waitcnt lgkmcnt(0)")
    E = lambda a: epilogue(a, sf)
    st0 = [store(0, sf), store(1, sf), store(2, sf), outadv()]
    if "nost" in EXP: st0 = [outadv()]
    free = [0]
    pend = list(range(1, G))
    g = G
    old, new = QB, PB
    firstp = True
    npeel = G - 1 if args.even else (G - 1) // 2 + 1
    while True:
        cur = free.pop(0)
        if firstp:
            e1 = st0; e2 = E(ACC[pend[0]]); done = [pend.pop(0)]
            if not args.even and pend:
                e1 = st0 + E(ACC[done[0]]); e2 = E(ACC[pend[0]]); done.append(pend.pop(0))
            extra = rowreads(PB, G + 1)
        else:
            done = [pend.pop(0)]
            e1 = E(ACC[done[0]]); e2 = []
            if pend:
                done.append(pend.pop(0)); e2 = E(ACC[done[1]])
            extra = []
        last = (len(pend) == 0)
        tail = []
        if last:
            tail = [S(f"s_sub_u32 s{S_CNT}, s{S_NG}, {g+1}"), V(f"v_add_u32 v{V_LDS}, {(g+1)*XROW}, v{V_LDS}")]
        group(vm, ACC[cur], old, new, g, extra, e1, e2, tail)
        if firstp: stamp(P, args, 16)
        firstp = False
        free += done
        pend.append(cur)
        old, new = new, old
        g += 1
        if last: break
    assert len(pend) == 1
    A1 = ACC[pend[0]]; A0 = ACC[free[0]]
    assert g <= 10, g
    P("L_loop:")
    dec = [S(f"s_sub_u32 s{S_CNT}, s{S_CNT}, 1"), S(f"s_cmp_eq_u32 s{S_CNT}, 0")]
    group(None, A0, old, new, 0, [], E(A1), [], tail=dec)
    P("s_cbranch_scc1 L_fin1")
    group(None, A1, new, old, 1, [], E(A0), [], tail=[V(f"v_add_u32 v{V_LDS}, {2*XROW}, v{V_LDS}")] + dec)
    P("s_cbranch_scc0 L_loop")
    P("s_nop 7")
    for it in E(A1): emit(P, None, it)
    P("s_branch L_done")
    P("L_fin1:")
    P("s_nop 7")
    for it in E(A0): emit(P, None, it)
    P("L_done:")
    T = V_D
    if args.probe:
        a, b, K, wg = [int(x) for x in args.probe.split(",")]
        stamp(P, args, 17)
        P("s_waitcnt vmcnt(0)")
        stamp(P, args, 18)
        P("s_waitcnt lgkmcnt(0)")
        P(f"s_cmp_eq_u32 s2, {wg}")
        P("s_cbranch_scc0 L_end")
        P(f"s_sub_u32 s46, s{S_STAMP+2*b}, s{S_STAMP+2*a}")
        P(f"s_mul_i32 s46, s46, {K}")
        P(f"s_min_u32 s46, s46, 20000")
        P(f"s_add_u32 s46, s46, s{S_STAMP+2*18}")
        P("L_spin:")
        P("s_memrealtime s[50:51]")
        P("s_waitcnt lgkmcnt(0)")
        P("s_sub_u32 s53, s46, s50")
        P("s_cmp_gt_i32 s53, 0")
        P("s_cbranch_scc1 L_spin")
    elif args.stamps:
        stamp(P, args, 17)
        P("s_waitcnt vmcnt(0)")
        stamp(P, args, 18)
        P("s_waitcnt lgkmcnt(0)")
        P(f"s_lshl_b32 s46, s2, 2"); P(f"s_add_u32 s46, s46, s{S_WAVE}"); P(f"s_lshl_b32 s46, s46, {8 if args.stamps >= 4 else 6}")
        P(f"v_mov_b32 v{T}, s46")
        P(f"v_cmp_eq_u32 vcc, 0, v{V_LANE}")
        P("s_and_saveexec_b64 s[54:55], vcc")
        for i in range(19 if args.stamps >= 4 else 8):
            P(f"v_mov_b32 v{T+2}, s{S_STAMP+2*i}"); P(f"v_mov_b32 v{T+3}, s{S_STAMP+2*i+1}")
            P(f"global_store_dwordx2 v{T}, v[{T+2}:{T+3}], s[58:59] offset:{8*i}")
            P("s_nop 1")
    P("L_end:")
    P("s_endpgm")
    ftr = f"""
.section .rodata,"a"
.p2align 6
.amdhsa_kernel {NAME}
  .amdhsa_next_free_vgpr 512
  .amdhsa_next_free_sgpr 102
  .amdhsa_accum_offset 256
  .amdhsa_group_segment_fixed_size 0
  .amdhsa_kernarg_size 48
  .amdhsa_user_sgpr_count 2
  .amdhsa_user_sgpr_kernarg_segment_ptr 1
  .amdhsa_system_sgpr_workgroup_id_x 1
.end_amdhsa_kernel
"""
    return hdr + P.text() + ftr

def parser():
    ap = argparse.ArgumentParser()
    ap.add_argument("-o", default="standalone__transposed_strided__vision.s")
    ap.add_argument("--G", type=int, default=5)
    ap.add_argument("--store-flags", default="sc0 sc1")
    ap.add_argument("--stamps", type=int, default=0)
    ap.add_argument("--warm", type=int, default=1)
    ap.add_argument("--exp", default="")
    ap.add_argument("--probe", default="")
    ap.add_argument("--codepf", type=int, default=1)
    ap.add_argument("--xflags", default="nt")
    ap.add_argument("--wflags", default="")
    ap.add_argument("--even", type=int, default=1)
    ap.add_argument("--tailgap", type=int, default=4)
    ap.add_argument("--barsteps", default="0,1,2,3,4,5")
    ap.add_argument("--rsched", default="0:0,1:1,2:2+3,3:4+5,4:6+7,5:8,6:9,7:10,8:11")
    ap.add_argument("--dsched", default="0:2+3,1:4+5+6,2:7+8,3:9+10,4:11")
    ap.add_argument("--xsched", default="4:6+7+8,5:9+10+11+12")
    return ap

if __name__ == "__main__":
    args = parser().parse_args()
    open(args.o, "w").write(gen(args))
```

```python
import sys, argparse

NAME = "standalone__transposed_strided__vision_kernel"

XROW = 4096
NXROWS = 26
WB = NXROWS * XROW
WSLOT = 6160
NRING = 4
WPH = WSLOT * NRING
LDS_BYTES = WB + 2 * WPH

def wreg(s, t):
    f = s * 6 + t
    if f < 64:
        return "a", 4 * f
    return "v", 224 + 4 * (f - 64)
def rng(kind, base, n):
    return f"{kind}[{base}:{base+n-1}]"
ACC = [0, 24, 48, 72, 96]
BIAS = 120
BFR = 144
OUTP = 192
V_LDS, V_OUT, V_TR, V_TR2 = 204, 205, 206, 207
V_W0, V_W1, V_W2 = 208, 209, 210
V_X0 = 211
V_BOFF = 212
V_LANE = 213
V_T = 96
V_D = 216

S_X, S_W, S_O, S_B = 8, 12, 16, 20
S_WAVE, S_PX, S_HALF, S_PY, S_STRIP, S_R0, S_NG, S_OUT, S_WG, S_T, S_WL, S_XR = 28, 29, 30, 31, 32, 33, 34, 35, 36, 37, 38, 39
S_T2, S_CNT, S_XSZ, S_XL, S_XG, S_WM, S_WM2, S_WL2 = 40, 41, 42, 43, 44, 48, 49, 56
S_STAMP = 60

class Prog:
    def __init__(self):
        self.L = []
    def __call__(self, s):
        if s is not None:
            self.L.append(s)
    def text(self):
        return "\n".join(("" if l.endswith(":") else "    ") + l for l in self.L) + "\n"

class VM:
    def __init__(self, ops=None):
        self.ops = list(ops) if ops else []
    def add(self, tag):
        self.ops.append(tag)
    def wait(self, tags):
        idx = [i for i, t in enumerate(self.ops) if t in tags]
        if not idx: return None
        n = len(self.ops) - 1 - max(idx)
        assert n <= 63, n
        return f"s_waitcnt vmcnt({n})"

C_S, C_V, C_DS, C_DMA, C_ST = 4, 4, 8, 8, 8
def S(x): return (x, None, C_S)
def V(x): return (x, None, C_V)
def D(x): return (x, None, C_DS)
EXP = ""; XFL = "nt"; WFL = ""; GG = 5

SLOTS = None
def slot_of(c):
    return SLOTS[c]

def mfma(acc, t, s, bf, first):
    k, b = wreg(s, t)
    d = rng("v", acc + 4 * t, 4)
    c = rng("v", BIAS + 4 * t, 4) if first else d
    return f"v_mfma_f32_16x16x32_bf16 {d}, {rng(k, b, 4)}, {rng('v', bf, 4)}, {c}"

def bread(bf, row, b, ks):
    off = row * XROW + (1 - b) * 224 + ks * 64
    assert off < 65536
    return D(f"ds_read_b128 {rng('v', bf, 4)}, v{V_LDS} offset:{off}")

def rowreads(buf, row):
    return [bread(buf + 4 * (b * 3 + ks), row, b, ks) for b in range(2) for ks in range(3)]

def trreads(c):
    L = []
    kind, slot = slot_of(c)
    va = V_TR if kind == "ring" else V_TR2
    for t in range(6):
        j, tb = t >> 1, t & 1
        k, b = wreg(c, t)
        for h in range(2):
            off = slot * WSLOT + h * 768 + j * 64 + tb * 8
            L.append(D(f"ds_read_b64_tr_b16 {rng(k, b + 2 * h, 2)}, v{va} offset:{off}"))
    return L

def wdma(c):
    kind, slot = slot_of(c)
    sm = S_WM if kind == "ring" else S_WM2
    tap, ks = divmod(c, 3)
    a, b = tap >> 1, tap & 1
    goff = (2 * a * 4 + 2 * b) * 18432 + ks * 6144
    tag = f"w{c}"
    def ld(v, off):
        o = f" offset:{off}" if off else ""
        return (f"buffer_load_dwordx4 v{v}, s[{S_W}:{S_W+3}], s{S_T} offen{o} {WFL} lds".replace("  ", " "), tag, C_DMA)
    return [
        S(f"s_add_u32 m0, s{sm}, {slot * WSLOT}"),
        S(f"s_add_u32 s{S_T}, s{S_WG}, {goff}"),
        ld(V_W0, 0), ld(V_W1, 1024), ld(V_W2, 2048),
    ]

def xdma(rho):
    tag = f"x{rho}"
    L = []
    chk = rho in (0, 24, 25)
    if chk:
        L.append(S(f"s_add_u32 s{S_T2}, s{S_XR}, {rho}"))
        L.append(S(f"s_cmp_lt_u32 s{S_T2}, 224"))
        L.append(S(f"s_cselect_b32 s{S_X+2}, s{S_XSZ}, 0"))
    L.append(S(f"s_add_u32 m0, s{S_XL}, {rho * XROW}"))
    L.append(S(f"s_add_u32 s{S_T2}, s{S_XG}, {rho * 43008}"))
    L.append((f"buffer_load_dwordx4 v{V_X0}, s[{S_X}:{S_X+3}], s{S_T2} offen {XFL} lds".replace("  ", " "), tag, C_DMA))
    if chk:
        L.append(S(f"s_mov_b32 s{S_X+2}, s{S_XSZ}"))
    return L

def cvts(acc, j):
    o = OUTP + 4 * j
    t0, t1 = acc + 8 * j, acc + 8 * j + 4
    return [V(f"v_cvt_pk_bf16_f32 v{o}, v{t0}, v{t0+1}"), V(f"v_cvt_pk_bf16_f32 v{o+1}, v{t0+2}, v{t0+3}"),
            V(f"v_cvt_pk_bf16_f32 v{o+2}, v{t1}, v{t1+1}"), V(f"v_cvt_pk_bf16_f32 v{o+3}, v{t1+2}, v{t1+3}")]
def store(j, sf):
    o = OUTP + 4 * j
    return (f"buffer_store_dwordx4 {rng('v', o, 4)}, v{V_OUT}, s[{S_O}:{S_O+3}], s{S_OUT} offen offset:{64*j} {sf}".rstrip(), "st", C_ST)
def outadv():
    return S(f"s_add_u32 s{S_OUT}, s{S_OUT}, {2*448*192}")
def epilogue(acc, sf):
    L = []
    for j in range(3):
        L += cvts(acc, j) + [store(j, sf)]
    L.append(outadv())
    if "nost" in EXP: L = [x for x in L if x[1] != "st"]
    return L

def emit(P, vm, item):
    txt, tag = item[0], item[1]
    P(txt)
    if tag is not None and vm is not None:
        vm.add(tag)

def pack(fillers, budget=8):
    out = []; cur = []; c = 0
    for it in fillers:
        if cur and c + it[2] > budget:
            out.append(cur); cur = []; c = 0
        cur.append(it); c += it[2]
    if cur: out.append(cur)
    return out

def spread_bundles(P, vm, mfmas, bundles, start=0, end=None):
    n = len(mfmas)
    if end is None: end = n
    gaps = end - start
    at = {}
    for i, b in enumerate(bundles):
        g = start + (i * gaps) // len(bundles)
        at.setdefault(g, []).extend(b)
    for i, m in enumerate(mfmas):
        P(m)
        for it in at.get(i, []):
            emit(P, vm, it)

def interleave(P, vm, mfmas, fillers, start=0, end=None):
    bundles = pack(fillers)
    if not bundles:
        for m in mfmas: P(m)
        return
    spread_bundles(P, vm, mfmas, bundles, start, end)

def mix(a, b):
    out = []; i = j = 0
    while i < len(a) or j < len(b):
        if j >= len(b) or (i < len(a) and i * len(b) <= j * len(a)):
            out.append(a[i]); i += 1
        else:
            out.append(b[j]); j += 1
    return out

def dma_bundles(items):
    out = []; cur = []
    for it in items:
        cur.append(it)
        if it[1] is not None:
            out.append(cur); cur = []
    if cur:
        out[-1] = out[-1] + cur
    return out

COARSE = {0: 0, 1: 1, 2: 2, 3: 3, 14: 7, 15: 4, 17: 5, 18: 6}
def stamp(P, args, idx):
    if args.stamps in (1, 3):
        if idx in COARSE: i = COARSE[idx]; P(f"s_memrealtime s[{S_STAMP+2*i}:{S_STAMP+2*i+1}]")
    elif args.stamps == 4:
        P(f"s_memtime s[{S_STAMP+2*idx}:{S_STAMP+2*idx+1}]")
    elif args.stamps == 5:
        P(f"s_memrealtime s[{S_STAMP+2*idx}:{S_STAMP+2*idx+1}]")

def gen(args):
    G = args.G
    sf = args.store_flags
    if args.probe: args.stamps = 5
    global EXP, XFL, WFL, GG
    EXP = args.exp; XFL = args.xflags; WFL = args.wflags; GG = G
    global SLOTS
    SLOTS = [("ring" if t[0] == "r" else "bor", int(t[1:])) for t in args.slots.split(",")]
    assert all(k < ((12 - G) * XROW) // WSLOT for kind, k in SLOTS if kind == "bor")
    P = Prog()
    hdr = f"""; Transposed conv 4x4 stride 2, x(1,224,224,96) bf16 -> out(1,448,448,96) bf16, gfx950.
; One workgroup = (16-pixel-wide strip x 24/25 input rows, output row parity py); wave = (px, half).
; Each wave keeps the 4 taps of its phase (384 x 96 bf16) in 288 registers and streams pixel rows from LDS.
; @launch grid=(256,1,1) block=(256,1,1) lds={LDS_BYTES}
.amdgcn_target "amdgcn-amd-amdhsa--gfx950"
.text
.globl {NAME}
.p2align 8
.type {NAME},@function
{NAME}:
"""
    stamp(P, args, 0)
    P("s_load_dwordx4 s[4:7], s[0:1], 0")
    P("s_load_dwordx4 s[24:27], s[0:1], 16")
    if args.stamps and not args.probe:
        P(f"s_load_dwordx2 s[58:59], s[0:1], {32 if args.stamps == 3 else 40}")
    P("s_and_b32 s3, s2, 7")
    P("s_lshr_b32 s45, s2, 3")
    P(f"s_and_b32 s{S_PY}, s45, 1")
    P("s_lshr_b32 s46, s45, 1")
    P("s_lshl_b32 s3, s3, 4")
    P("s_add_u32 s3, s3, s46")
    P("s_cmp_ge_u32 s2, 256")
    P("s_cbranch_scc1 L_end")
    P("s_cmp_ge_u32 s3, 126")
    P("s_cbranch_scc1 L_end")
    l = V_LANE
    P(f"v_lshrrev_b32 v{V_T}, 6, v0")
    P(f"v_and_b32 v{l}, 63, v0")
    P(f"s_mul_i32 s{S_STRIP}, s3, 7282")
    P(f"v_readfirstlane_b32 s{S_WAVE}, v{V_T}")
    P(f"s_lshr_b32 s{S_STRIP}, s{S_STRIP}, 16")
    P(f"s_mul_i32 s46, s{S_STRIP}, 9")
    P("s_sub_u32 s46, s3, s46")
    P(f"s_mul_i32 s{S_R0}, s46, 25")
    P(f"s_and_b32 s{S_PX}, s{S_WAVE}, 1")
    P(f"s_lshr_b32 s{S_HALF}, s{S_WAVE}, 1")
    P("s_cmp_lt_u32 s46, 8")
    P(f"s_cselect_b32 s{S_NG}, 12, 11")
    P(f"s_cmp_eq_u32 s{S_HALF}, 0")
    P(f"s_cselect_b32 s{S_NG}, 13, s{S_NG}")
    P(f"s_lshl_b32 s52, s45, 2")
    P(f"s_add_u32 s52, s52, s{S_WAVE}")
    if args.codepf:
        P("s_getpc_b64 s[50:51]")
        P("L_pc:")
        P(f"s_lshl_b32 s53, s52, 7")
        P(f"v_mov_b32 v{V_D+2}, s53")
        P(f"s_cmp_lt_u32 s53, L_end-L_pc")
        P(f"s_cbranch_scc0 L_nopf")
        P(f"global_load_dword v{V_D+3}, v{V_D+2}, s[50:51]")
        P(f"L_nopf:")
    P("s_mul_i32 s47, s52, 2304")
    P(f"v_lshlrev_b32 v{V_T+3}, 7, v{l}")
    P(f"v_add_u32 v{V_T+3}, s47, v{V_T+3}")
    P(f"v_cmp_gt_u32 vcc, 18, v{l}")
    P(f"v_mov_b32 v{V_T+5}, 0x80000000")
    P(f"v_lshrrev_b32 v{V_T}, 4, v{l}")
    P(f"v_cndmask_b32 v{V_T+3}, v{V_T+5}, v{V_T+3}, vcc")
    P(f"v_lshlrev_b32 v{V_BOFF}, 4, v{V_T}")
    P(f"s_mul_i32 s46, s{S_HALF}, 1536")
    P(f"v_lshlrev_b32 v{V_W0}, 4, v{l}")
    P(f"v_lshrrev_b32 v{V_T+2}, 5, v{l}")
    P(f"v_add_u32 v{V_W0}, s46, v{V_W0}")
    P(f"v_mul_u32_u24 v{V_T+2}, 1536, v{V_T+2}")
    P(f"v_add_u32 v{V_W2}, 1536, v{V_W0}")
    P(f"v_add_u32 v{V_W1}, v{V_W0}, v{V_T+2}")
    P(f"s_sub_u32 s46, 1, s{S_PY}")
    P("s_lshl_b32 s46, s46, 2")
    P(f"s_sub_u32 s47, 1, s{S_PX}")
    P("s_add_u32 s46, s46, s47")
    P(f"s_mul_i32 s{S_WG}, s46, 18432")
    P(f"s_mul_i32 s{S_WL}, s{S_PX}, {WPH}")
    P(f"s_add_u32 s{S_WL}, s{S_WL}, {WB}")
    P(f"s_mul_i32 s46, s{S_HALF}, 3080")
    P(f"s_add_u32 s{S_WM}, s{S_WL}, s46")
    P(f"s_mul_i32 s{S_WL2}, s{S_PX}, {13 * XROW}")
    P(f"s_add_u32 s{S_WL2}, s{S_WL2}, {(G + 1) * XROW}")
    P(f"s_add_u32 s{S_WM2}, s{S_WL2}, s46")
    P(f"s_lshl_b32 s46, s{S_WAVE}, 6")
    P(f"s_lshl_b32 s{S_XL}, s{S_WAVE}, 10")
    P(f"s_lshl_b32 s47, s{S_STRIP}, 4")
    P("s_sub_u32 s47, s47, 1")
    t = V_T + 6
    P(f"v_add_u32 v{t}, s46, v{l}")
    P(f"v_mul_u32_u24 v{t+1}, 4682, v{t}")
    P(f"v_lshrrev_b32 v{t+1}, 16, v{t+1}")
    P(f"v_mul_u32_u24 v{t+2}, 14, v{t+1}")
    P(f"v_sub_u32 v{t+2}, v{t}, v{t+2}")
    P(f"v_add_u32 v{t+3}, s47, v{t+1}")
    P(f"v_cmp_gt_u32 vcc, 12, v{t+2}")
    P(f"v_mul_i32_i24 v{t+4}, 192, v{t+3}")
    P(f"v_lshl_add_u32 v{t+4}, v{t+2}, 4, v{t+4}")
    P(f"v_cndmask_b32 v{t+4}, v{V_T+5}, v{t+4}, vcc")
    P(f"v_cmp_gt_u32 vcc, 18, v{t+1}")
    P(f"s_add_u32 s{S_XR}, s{S_R0}, s{S_PY}")
    P(f"s_sub_u32 s{S_XR}, s{S_XR}, 1")
    P(f"v_cndmask_b32 v{t+4}, v{V_T+5}, v{t+4}, vcc")
    P(f"v_cmp_gt_u32 vcc, 224, v{t+3}")
    P(f"s_mul_i32 s{S_XG}, s{S_XR}, 43008")
    P(f"s_mov_b32 s{S_XSZ}, 9633792")
    P(f"v_cndmask_b32 v{V_X0}, v{V_T+5}, v{t+4}, vcc")
    P("s_waitcnt lgkmcnt(0)")
    stamp(P, args, 1)
    vm = VM(["code"] if args.codepf else [])
    def srd(r, lo, sz):
        P(f"s_mov_b32 s{r}, s{lo}")
        P(f"s_mov_b32 s{r+1}, s{lo+1}")
        P(f"s_mov_b32 s{r+2}, {sz}")
        P(f"s_mov_b32 s{r+3}, 0x20000")
    def warm():
        if args.warm:
            P(f"buffer_load_dword v{V_D}, v{V_T+3}, s[{S_W}:{S_W+3}], 0 offen")
            vm.add("warm")
    def biasloads():
        for j in range(3):
            P(f"buffer_load_dwordx4 {rng('v', OUTP+4*j, 4)}, v{V_BOFF}, s[{S_B}:{S_B+3}], 0 offen offset:{64*j}")
            vm.add("bias")
    srd(S_W, 6, 294912)
    if args.warm == 1: warm()
    for it in wdma(0): emit(P, vm, it)
    srd(S_B, 24, 192)
    biasloads()
    srd(S_X, 4, 9633792)

    def late_setup():
        q, p = V_T, V_T + 1
        L = []
        A = L.append
        A(f"v_and_b32 v{p}, 15, v{l}")
        A(f"v_add_u32 v{V_T+2}, s{S_PX}, v{p}")
        A(f"v_mul_u32_u24 v{V_T+2}, 224, v{V_T+2}")
        A(f"v_lshl_add_u32 v{V_T+2}, v{q}, 4, v{V_T+2}")
        A(f"s_mul_i32 s46, s{S_HALF}, {13*XROW}")
        A(f"v_add_u32 v{V_LDS}, s46, v{V_T+2}")
        A(f"v_mul_u32_u24 v{V_T+2}, 384, v{p}")
        A(f"v_lshl_add_u32 v{V_T+2}, v{q}, 4, v{V_T+2}")
        A(f"s_mul_i32 s46, s{S_PX}, 192")
        A(f"v_add_u32 v{V_OUT}, s46, v{V_T+2}")
        A(f"s_mul_i32 s46, s{S_HALF}, 13")
        A(f"s_add_u32 s46, s46, s{S_R0}")
        A("s_lshl_b32 s46, s46, 1")
        A(f"s_add_u32 s46, s46, s{S_PY}")
        A("s_mul_i32 s46, s46, 448")
        A(f"s_lshl_b32 s47, s{S_STRIP}, 5")
        A("s_add_u32 s46, s46, s47")
        A(f"s_mul_i32 s{S_OUT}, s46, 192")
        A(f"v_and_b32 v{V_T+2}, 1, v{q}")
        A(f"v_mul_u32_u24 v{V_T+2}, 3080, v{V_T+2}")
        A(f"v_lshrrev_b32 v{V_T+4}, 1, v{q}")
        A(f"v_mul_u32_u24 v{V_T+4}, 1536, v{V_T+4}")
        A(f"v_add_u32 v{V_T+2}, v{V_T+2}, v{V_T+4}")
        A(f"v_bfe_u32 v{V_T+4}, v{l}, 2, 2")
        A(f"v_mul_u32_u24 v{V_T+4}, 192, v{V_T+4}")
        A(f"v_add_u32 v{V_T+2}, v{V_T+2}, v{V_T+4}")
        A(f"v_and_b32 v{V_T+4}, 3, v{l}")
        A(f"v_lshl_add_u32 v{V_T+2}, v{V_T+4}, 4, v{V_T+2}")
        A(f"v_add_u32 v{V_TR}, s{S_WL}, v{V_T+2}")
        A(f"v_add_u32 v{V_TR2}, s{S_WL2}, v{V_T+2}")
        return L

    PB, QB = BFR, BFR + 24
    def bfr(s, g):
        return BFR + 4 * (((s + 1) & 1) * G + g)
    assert 4 * G <= 24
    X = lambda rows: [f"x{r}" for r in rows]
    def pair(r): return [q for q in (r, 13 + r) if q <= 25]
    first = []
    for g in range(G): first += [1 + g, 14 + g]
    second = [0, 13]
    rsched = {int(k): [int(c) for c in v.split("+")] for k, v in (kv.split(":") for kv in args.rsched.split(","))}
    dsched = {int(k): [int(c) for c in v.split("+")] for k, v in (kv.split(":") for kv in args.dsched.split(","))}
    xsched = {int(k): [int(c) for c in v.split("+")] for k, v in (kv.split(":") for kv in args.xsched.split(","))}
    rstep = {c: s for s, v in rsched.items() for c in v}
    dstep = {c: s for s, v in dsched.items() for c in v}
    pre_w = [c for c in range(12) if c not in dstep]
    assert sorted(rstep) == list(range(12)) and pre_w[0] == 0
    for c in range(12):
        assert rstep[c] <= c
        if c in dstep: assert dstep[c] < rstep[c]
    for c2 in range(12):
        for c1 in range(c2):
            if slot_of(c1) == slot_of(c2): assert dstep[c2] >= rstep[c1] + 1, (c1, c2)
    xrows_rest = sorted(r for v in xsched.values() for r in v)
    assert xrows_rest == list(range(G + 1, 13)), xrows_rest
    nb = ((12 - G) * XROW) // WSLOT
    for s, v in xsched.items():
        for r in v:
            lo, hi = (r - G - 1) * XROW, (r - G) * XROW
            for b in range(nb):
                if lo < (b + 1) * WSLOT and hi > b * WSLOT:
                    for c in range(12):
                        if slot_of(c) == ("bor", b): assert s >= rstep[c] + 1, (r, s, b)
    bar_steps = sorted(set(rsched.keys()))
    if args.barsteps:
        bar_steps = [int(x) for x in args.barsteps.split(",")]

    for r in first:
        for it in xdma(r): emit(P, vm, it)
    if args.warm == 2: warm()
    for c in pre_w[1:2]:
        for it in wdma(c): emit(P, vm, it)
    for r in second:
        for it in xdma(r): emit(P, vm, it)
    for c in pre_w[2:]:
        for it in wdma(c): emit(P, vm, it)
    srd(S_O, 26, 38535168)
    for i in late_setup(): P(i)
    P(vm.wait(["bias"]))
    for j in range(3):
        for i in range(4):
            P(f"v_lshlrev_b32 v{BIAS+8*j+2*i}, 16, v{OUTP+4*j+i}")
            P(f"v_and_b32 v{BIAS+8*j+2*i+1}, 0xffff0000, v{OUTP+4*j+i}")
    stamp(P, args, 2)

    NM = 6 * G
    covered = set()
    for s in range(13):
        mf = []
        if s >= 1:
            P("s_waitcnt lgkmcnt(0)")
            for g in range(G):
                for t in range(6):
                    mf.append(mfma(ACC[g], t, s - 1, bfr(s - 1, g), s - 1 == 0))
        if s <= 11:
            rc = rsched.get(s, [])
            need = []
            if s in bar_steps:
                nxt = [b for b in bar_steps if b > s]
                upto = (nxt[0] if nxt else 13)
                pub = [c for c in range(12) if s <= rstep[c] < upto]
                need = [f"w{c}" for c in pub]
                covered |= set(pub)
                if s == 0: need += X(first)
                if s <= 6 and (not nxt or nxt[0] > 6): need += X(second)
            for c in rc: assert c in covered, (s, c)
            if s in bar_steps:
                if mf:
                    P(mf[0]); P(vm.wait(need)); P(mf[1]); P("s_barrier"); mf = mf[2:]
                else:
                    P(vm.wait(need)); P("s_barrier")
            if s == 0: stamp(P, args, 3)
            tap, ks = divmod(s, 3)
            a, b = tap >> 1, tap & 1
            breads = [bread(bfr(s, g), g + 1 - a, b, ks) for g in range(G)]
            trs = [x for c in rc for x in trreads(c)]
            dm = [x for c in dsched.get(s, []) for x in wdma(c)]
            xd = [x for r in xsched.get(s, []) for q in pair(r) for x in xdma(q)]
            if s == 0:
                for it in breads[:1] + trs + breads[1:] + dm + xd: emit(P, vm, it)
            else:
                rb = [[x] for x in breads + trs]
                db = dma_bundles(dm + xd) if (dm or xd) else []
                bl = mix(rb, db) if db else rb
                end = len(mf) - (args.tailgap if len(bl) <= len(mf) - args.tailgap else 0)
                if not db: end = max(len(rb), min(end, len(rb) + len(rb) // 2)) if rb else len(mf)
                spread_bundles(P, vm, mf, bl, 0, min(end, len(mf))) if bl else [P(m) for m in mf]
                stamp(P, args, 3 + s)
        else:
            pre = rowreads(QB, G)
            interleave(P, vm, mf[:9], pre)
            cv = cvts(ACC[0], 0) + cvts(ACC[0], 1) + cvts(ACC[0], 2)
            interleave(P, vm, mf[9:], cv)
    P(vm.wait(X(range(NXROWS))))
    P("s_barrier")
    P("L_main:")
    stamp(P, args, 15)

    def group(vm, accp, old, new, row, extra_first, e1, e2, tail=[]):
        mf = [mfma(accp, t, s, old + 4 * (s - 6), s == 6) for s in range(6, 12) for t in range(6)]
        interleave(P, vm, mf[:6], list(extra_first))
        interleave(P, vm, mf[6:], e1)
        mf = [mfma(accp, t, s, new + 4 * s, False) for s in range(0, 6) for t in range(6)]
        P("s_waitcnt lgkmcnt(0)")
        reads = rowreads(old, row + 2)
        interleave(P, vm, mf, mix(reads, e2) + list(tail))

    P("s_waitcnt lgkmcnt(0)")
    E = lambda a: epilogue(a, sf)
    st0 = [store(0, sf), store(1, sf), store(2, sf), outadv()]
    if "nost" in EXP: st0 = [outadv()]
    free = [0]
    pend = list(range(1, G))
    g = G
    old, new = QB, PB
    firstp = True
    npeel = G - 1 if args.even else (G - 1) // 2 + 1
    while True:
        cur = free.pop(0)
        if firstp:
            e1 = st0; e2 = E(ACC[pend[0]]); done = [pend.pop(0)]
            if not args.even and pend:
                e1 = st0 + E(ACC[done[0]]); e2 = E(ACC[pend[0]]); done.append(pend.pop(0))
            extra = rowreads(PB, G + 1)
        else:
            done = [pend.pop(0)]
            e1 = E(ACC[done[0]]); e2 = []
            if pend:
                done.append(pend.pop(0)); e2 = E(ACC[done[1]])
            extra = []
        last = (len(pend) == 0)
        tail = []
        if last:
            tail = [S(f"s_sub_u32 s{S_CNT}, s{S_NG}, {g+1}"), V(f"v_add_u32 v{V_LDS}, {(g+1)*XROW}, v{V_LDS}")]
        group(vm, ACC[cur], old, new, g, extra, e1, e2, tail)
        if firstp: stamp(P, args, 16)
        firstp = False
        free += done
        pend.append(cur)
        old, new = new, old
        g += 1
        if last: break
    assert len(pend) == 1
    A1 = ACC[pend[0]]; A0 = ACC[free[0]]
    assert g <= 10, g
    P("L_loop:")
    dec = [S(f"s_sub_u32 s{S_CNT}, s{S_CNT}, 1"), S(f"s_cmp_eq_u32 s{S_CNT}, 0")]
    group(None, A0, old, new, 0, [], E(A1), [], tail=dec)
    P("s_cbranch_scc1 L_fin1")
    group(None, A1, new, old, 1, [], E(A0), [], tail=[V(f"v_add_u32 v{V_LDS}, {2*XROW}, v{V_LDS}")] + dec)
    P("s_cbranch_scc0 L_loop")
    P("s_nop 7")
    for it in E(A1): emit(P, None, it)
    P("s_branch L_done")
    P("L_fin1:")
    P("s_nop 7")
    for it in E(A0): emit(P, None, it)
    P("L_done:")
    T = V_D
    if args.probe:
        a, b, K, wg = [int(x) for x in args.probe.split(",")]
        stamp(P, args, 17)
        P("s_waitcnt vmcnt(0)")
        stamp(P, args, 18)
        P("s_waitcnt lgkmcnt(0)")
        P(f"s_cmp_eq_u32 s2, {wg}")
        P("s_cbranch_scc0 L_end")
        P(f"s_sub_u32 s46, s{S_STAMP+2*b}, s{S_STAMP+2*a}")
        P(f"s_mul_i32 s46, s46, {K}")
        P(f"s_min_u32 s46, s46, 20000")
        P(f"s_add_u32 s46, s46, s{S_STAMP+2*18}")
        P("L_spin:")
        P("s_memrealtime s[50:51]")
        P("s_waitcnt lgkmcnt(0)")
        P("s_sub_u32 s53, s46, s50")
        P("s_cmp_gt_i32 s53, 0")
        P("s_cbranch_scc1 L_spin")
    elif args.stamps:
        stamp(P, args, 17)
        P("s_waitcnt vmcnt(0)")
        stamp(P, args, 18)
        P("s_waitcnt lgkmcnt(0)")
        P(f"s_lshl_b32 s46, s2, 2"); P(f"s_add_u32 s46, s46, s{S_WAVE}"); P(f"s_lshl_b32 s46, s46, {8 if args.stamps >= 4 else 6}")
        P(f"v_mov_b32 v{T}, s46")
        P(f"v_cmp_eq_u32 vcc, 0, v{V_LANE}")
        P("s_and_saveexec_b64 s[54:55], vcc")
        for i in range(19 if args.stamps >= 4 else 8):
            P(f"v_mov_b32 v{T+2}, s{S_STAMP+2*i}"); P(f"v_mov_b32 v{T+3}, s{S_STAMP+2*i+1}")
            P(f"global_store_dwordx2 v{T}, v[{T+2}:{T+3}], s[58:59] offset:{8*i}")
            P("s_nop 1")
    P("L_end:")
    P("s_endpgm")
    ftr = f"""
.section .rodata,"a"
.p2align 6
.amdhsa_kernel {NAME}
  .amdhsa_next_free_vgpr 512
  .amdhsa_next_free_sgpr 102
  .amdhsa_accum_offset 256
  .amdhsa_group_segment_fixed_size 0
  .amdhsa_kernarg_size 48
  .amdhsa_user_sgpr_count 2
  .amdhsa_user_sgpr_kernarg_segment_ptr 1
  .amdhsa_system_sgpr_workgroup_id_x 1
.end_amdhsa_kernel
"""
    return hdr + P.text() + ftr

def parser():
    ap = argparse.ArgumentParser()
    ap.add_argument("-o", default="standalone__transposed_strided__vision.s")
    ap.add_argument("--G", type=int, default=4)
    ap.add_argument("--store-flags", default="sc0 sc1")
    ap.add_argument("--stamps", type=int, default=0)
    ap.add_argument("--warm", type=int, default=1)
    ap.add_argument("--exp", default="")
    ap.add_argument("--probe", default="")
    ap.add_argument("--codepf", type=int, default=1)
    ap.add_argument("--xflags", default="nt")
    ap.add_argument("--wflags", default="")
    ap.add_argument("--even", type=int, default=1)
    ap.add_argument("--tailgap", type=int, default=4)
    ap.add_argument("--barsteps", default="0,1,2,3,4,5,6,8")
    ap.add_argument("--rsched", default="0:0,1:1,2:2+3,3:4+5,4:6,5:7,6:8,7:9,8:10,9:11")
    ap.add_argument("--dsched", default="1:2+3+4,2:5+6,3:7+8,4:9,5:10,6:11")
    ap.add_argument("--xsched", default="4:5+6+7,5:8+9+10,6:11+12")
    ap.add_argument("--slots", default="r0,r1,b0,b1,b2,b3,r2,r3,r0,r1,r2,r3")
    return ap

if __name__ == "__main__":
    args = parser().parse_args()
    open(args.o, "w").write(gen(args))
```

```python
import sys, argparse

NAME = "standalone__transposed_strided__vision_kernel"

XROW = 4096
NXROWS = 26
WB = NXROWS * XROW
WSLOT = 6160
NRING = 4
WPH = WSLOT * NRING
LDS_BYTES = WB + 2 * WPH

def wreg(s, t):
    f = s * 6 + t
    if f < 64:
        return "a", 4 * f
    return "v", 224 + 4 * (f - 64)
def rng(kind, base, n):
    return f"{kind}[{base}:{base+n-1}]"
ACC = [0, 24, 48, 72, 96]
BIAS = 120
BFR = 144
OUTP = 192
V_LDS, V_OUT, V_TR, V_TR2 = 204, 205, 206, 207
V_W0, V_W1, V_W2 = 208, 209, 210
V_X0 = 211
V_L12 = 214
S_OUT12 = 57
V_BOFF = 212
V_LANE = 213
V_T = 96
V_D = 216

S_X, S_W, S_O, S_B = 8, 12, 16, 20
S_WAVE, S_PX, S_HALF, S_PY, S_STRIP, S_R0, S_NG, S_OUT, S_WG, S_T, S_WL, S_XR = 28, 29, 30, 31, 32, 33, 34, 35, 36, 37, 38, 39
S_T2, S_CNT, S_XSZ, S_XL, S_XG, S_WM, S_WM2, S_WL2 = 40, 41, 42, 43, 44, 48, 49, 56
S_STAMP = 60

class Prog:
    def __init__(self):
        self.L = []
    def __call__(self, s):
        if s is not None:
            self.L.append(s)
    def text(self):
        return "\n".join(("" if l.endswith(":") else "    ") + l for l in self.L) + "\n"

class VM:
    def __init__(self, ops=None):
        self.ops = list(ops) if ops else []
    def add(self, tag):
        self.ops.append(tag)
    def wait(self, tags):
        idx = [i for i, t in enumerate(self.ops) if t in tags]
        if not idx: return None
        n = len(self.ops) - 1 - max(idx)
        assert n <= 63, n
        return f"s_waitcnt vmcnt({n})"

C_S, C_V, C_DS, C_DMA, C_ST = 4, 4, 8, 8, 8
def S(x): return (x, None, C_S)
def V(x): return (x, None, C_V)
def D(x): return (x, None, C_DS)
EXP = ""; XFL = "nt"; WFL = ""; GG = 5

SLOTS = None
def slot_of(c):
    return SLOTS[c]

def mfma(acc, t, s, bf, first):
    k, b = wreg(s, t)
    d = rng("v", acc + 4 * t, 4)
    c = rng("v", BIAS + 4 * t, 4) if first else d
    return f"v_mfma_f32_16x16x32_bf16 {d}, {rng(k, b, 4)}, {rng('v', bf, 4)}, {c}"

def bread(bf, row, b, ks):
    off = row * XROW + (1 - b) * 224 + ks * 64
    assert off < 65536
    return D(f"ds_read_b128 {rng('v', bf, 4)}, v{V_LDS} offset:{off}")

def rowreads(buf, row):
    return [bread(buf + 4 * (b * 3 + ks), row, b, ks) for b in range(2) for ks in range(3)]

def trreads(c):
    L = []
    kind, slot = slot_of(c)
    va = V_TR if kind == "ring" else V_TR2
    for t in range(6):
        j, tb = t >> 1, t & 1
        k, b = wreg(c, t)
        for h in range(2):
            off = slot * WSLOT + h * 768 + j * 64 + tb * 8
            L.append(D(f"ds_read_b64_tr_b16 {rng(k, b + 2 * h, 2)}, v{va} offset:{off}"))
    return L

def wdma(c):
    kind, slot = slot_of(c)
    sm = S_WM if kind == "ring" else S_WM2
    tap, ks = divmod(c, 3)
    a, b = tap >> 1, tap & 1
    goff = (2 * a * 4 + 2 * b) * 18432 + ks * 6144
    tag = f"w{c}"
    def ld(v, off):
        o = f" offset:{off}" if off else ""
        return (f"buffer_load_dwordx4 v{v}, s[{S_W}:{S_W+3}], s{S_T} offen{o} {WFL} lds".replace("  ", " "), tag, C_DMA)
    return [
        S(f"s_add_u32 m0, s{sm}, {slot * WSLOT}"),
        S(f"s_add_u32 s{S_T}, s{S_WG}, {goff}"),
        ld(V_W0, 0), ld(V_W1, 1024), ld(V_W2, 2048),
    ]

def xdma(rho):
    tag = f"x{rho}"
    L = []
    chk = rho in (0, 24, 25)
    if chk:
        L.append(S(f"s_add_u32 s{S_T2}, s{S_XR}, {rho}"))
        L.append(S(f"s_cmp_lt_u32 s{S_T2}, 224"))
        L.append(S(f"s_cselect_b32 s{S_X+2}, s{S_XSZ}, 0"))
    L.append(S(f"s_add_u32 m0, s{S_XL}, {rho * XROW}"))
    L.append(S(f"s_add_u32 s{S_T2}, s{S_XG}, {rho * 43008}"))
    L.append((f"buffer_load_dwordx4 v{V_X0}, s[{S_X}:{S_X+3}], s{S_T2} offen {XFL} lds".replace("  ", " "), tag, C_DMA))
    if chk:
        L.append(S(f"s_mov_b32 s{S_X+2}, s{S_XSZ}"))
    return L

def cvts(acc, j):
    o = OUTP + 4 * j
    t0, t1 = acc + 8 * j, acc + 8 * j + 4
    return [V(f"v_cvt_pk_bf16_f32 v{o}, v{t0}, v{t0+1}"), V(f"v_cvt_pk_bf16_f32 v{o+1}, v{t0+2}, v{t0+3}"),
            V(f"v_cvt_pk_bf16_f32 v{o+2}, v{t1}, v{t1+1}"), V(f"v_cvt_pk_bf16_f32 v{o+3}, v{t1+2}, v{t1+3}")]
def store(j, sf):
    o = OUTP + 4 * j
    return (f"buffer_store_dwordx4 {rng('v', o, 4)}, v{V_OUT}, s[{S_O}:{S_O+3}], s{S_OUT} offen offset:{64*j} {sf}".rstrip(), "st", C_ST)
def outadv():
    return S(f"s_add_u32 s{S_OUT}, s{S_OUT}, {2*448*192}")
def epilogue(acc, sf):
    L = []
    for j in range(3):
        L += cvts(acc, j) + [store(j, sf)]
    L.append(outadv())
    if "nost" in EXP: L = [x for x in L if x[1] != "st"]
    return L

def emit(P, vm, item):
    txt, tag = item[0], item[1]
    P(txt)
    if tag is not None and vm is not None:
        vm.add(tag)

def pack(fillers, budget=8):
    out = []; cur = []; c = 0
    for it in fillers:
        if cur and c + it[2] > budget:
            out.append(cur); cur = []; c = 0
        cur.append(it); c += it[2]
    if cur: out.append(cur)
    return out

def spread_bundles(P, vm, mfmas, bundles, start=0, end=None):
    n = len(mfmas)
    if end is None: end = n
    gaps = end - start
    at = {}
    for i, b in enumerate(bundles):
        g = start + (i * gaps) // len(bundles)
        at.setdefault(g, []).extend(b)
    for i, m in enumerate(mfmas):
        P(m)
        for it in at.get(i, []):
            emit(P, vm, it)

def interleave(P, vm, mfmas, fillers, start=0, end=None):
    bundles = pack(fillers)
    if not bundles:
        for m in mfmas: P(m)
        return
    spread_bundles(P, vm, mfmas, bundles, start, end)

def mix(a, b):
    out = []; i = j = 0
    while i < len(a) or j < len(b):
        if j >= len(b) or (i < len(a) and i * len(b) <= j * len(a)):
            out.append(a[i]); i += 1
        else:
            out.append(b[j]); j += 1
    return out

def dma_bundles(items):
    out = []; cur = []
    for it in items:
        cur.append(it)
        if it[1] is not None:
            out.append(cur); cur = []
    if cur:
        out[-1] = out[-1] + cur
    return out

COARSE = {0: 0, 1: 1, 2: 2, 3: 3, 14: 7, 15: 4, 17: 5, 18: 6}
def stamp(P, args, idx):
    if args.stamps in (1, 3):
        if idx in COARSE: i = COARSE[idx]; P(f"s_memrealtime s[{S_STAMP+2*i}:{S_STAMP+2*i+1}]")
    elif args.stamps == 4:
        P(f"s_memtime s[{S_STAMP+2*idx}:{S_STAMP+2*idx+1}]")
    elif args.stamps == 5:
        P(f"s_memrealtime s[{S_STAMP+2*idx}:{S_STAMP+2*idx+1}]")

def gen(args):
    G = args.G
    sf = args.store_flags
    if args.probe: args.stamps = 5
    global EXP, XFL, WFL, GG
    EXP = args.exp; XFL = args.xflags; WFL = args.wflags; GG = G
    global SLOTS
    SLOTS = [("ring" if t[0] == "r" else "bor", int(t[1:])) for t in args.slots.split(",")]
    assert all(k < ((12 - G) * XROW) // WSLOT for kind, k in SLOTS if kind == "bor")
    P = Prog()
    hdr = f"""; Transposed conv 4x4 stride 2, x(1,224,224,96) bf16 -> out(1,448,448,96) bf16, gfx950.
; One workgroup = (16-pixel-wide strip x 24/25 input rows, output row parity py); wave = (px, half).
; Each wave keeps the 4 taps of its phase (384 x 96 bf16) in 288 registers and streams pixel rows from LDS.
; @launch grid=(256,1,1) block=(256,1,1) lds={LDS_BYTES}
.amdgcn_target "amdgcn-amd-amdhsa--gfx950"
.text
.globl {NAME}
.p2align 8
.type {NAME},@function
{NAME}:
"""
    stamp(P, args, 0)
    P("s_load_dwordx4 s[4:7], s[0:1], 0")
    P("s_load_dwordx4 s[24:27], s[0:1], 16")
    if args.stamps and not args.probe:
        P(f"s_load_dwordx2 s[58:59], s[0:1], {32 if args.stamps == 3 else 40}")
    P("s_and_b32 s3, s2, 7")
    P("s_lshr_b32 s45, s2, 3")
    P(f"s_and_b32 s{S_PY}, s45, 1")
    P("s_lshr_b32 s46, s45, 1")
    P("s_lshl_b32 s3, s3, 4")
    P("s_add_u32 s3, s3, s46")
    P("s_cmp_ge_u32 s2, 256")
    P("s_cbranch_scc1 L_end")
    P("s_cmp_ge_u32 s3, 126")
    P("s_cbranch_scc1 L_end")
    l = V_LANE
    P(f"v_lshrrev_b32 v{V_T}, 6, v0")
    P(f"v_and_b32 v{l}, 63, v0")
    P(f"s_mul_i32 s{S_STRIP}, s3, 7282")
    P(f"v_readfirstlane_b32 s{S_WAVE}, v{V_T}")
    P(f"s_lshr_b32 s{S_STRIP}, s{S_STRIP}, 16")
    P(f"s_mul_i32 s46, s{S_STRIP}, 9")
    P("s_sub_u32 s46, s3, s46")
    P(f"s_mul_i32 s{S_R0}, s46, 25")
    P(f"s_and_b32 s{S_PX}, s{S_WAVE}, 1")
    P(f"s_lshr_b32 s{S_HALF}, s{S_WAVE}, 1")
    P("s_cmp_lt_u32 s46, 8")
    P(f"s_cselect_b32 s{S_NG}, 12, 11")
    P(f"s_cmp_eq_u32 s{S_HALF}, 0")
    P(f"s_cselect_b32 s{S_NG}, {12 if args.share else 13}, s{S_NG}")
    P(f"s_lshl_b32 s52, s45, 2")
    P(f"s_add_u32 s52, s52, s{S_WAVE}")
    if args.codepf:
        P("s_getpc_b64 s[50:51]")
        P("L_pc:")
        P(f"s_lshl_b32 s53, s52, 7")
        P(f"v_mov_b32 v{V_D+2}, s53")
        P(f"s_cmp_lt_u32 s53, L_end-L_pc")
        P(f"s_cbranch_scc0 L_nopf")
        P(f"global_load_dword v{V_D+3}, v{V_D+2}, s[50:51]")
        P(f"L_nopf:")
    P("s_mul_i32 s47, s52, 2304")
    P(f"v_lshlrev_b32 v{V_T+3}, 7, v{l}")
    P(f"v_add_u32 v{V_T+3}, s47, v{V_T+3}")
    P(f"v_cmp_gt_u32 vcc, 18, v{l}")
    P(f"v_mov_b32 v{V_T+5}, 0x80000000")
    P(f"v_lshrrev_b32 v{V_T}, 4, v{l}")
    P(f"v_cndmask_b32 v{V_T+3}, v{V_T+5}, v{V_T+3}, vcc")
    P(f"v_lshlrev_b32 v{V_BOFF}, 4, v{V_T}")
    P(f"s_mul_i32 s46, s{S_HALF}, 1536")
    P(f"v_lshlrev_b32 v{V_W0}, 4, v{l}")
    P(f"v_lshrrev_b32 v{V_T+2}, 5, v{l}")
    P(f"v_add_u32 v{V_W0}, s46, v{V_W0}")
    P(f"v_mul_u32_u24 v{V_T+2}, 1536, v{V_T+2}")
    P(f"v_add_u32 v{V_W2}, 1536, v{V_W0}")
    P(f"v_add_u32 v{V_W1}, v{V_W0}, v{V_T+2}")
    P(f"s_sub_u32 s46, 1, s{S_PY}")
    P("s_lshl_b32 s46, s46, 2")
    P(f"s_sub_u32 s47, 1, s{S_PX}")
    P("s_add_u32 s46, s46, s47")
    P(f"s_mul_i32 s{S_WG}, s46, 18432")
    P(f"s_mul_i32 s{S_WL}, s{S_PX}, {WPH}")
    P(f"s_add_u32 s{S_WL}, s{S_WL}, {WB}")
    P(f"s_mul_i32 s46, s{S_HALF}, 3080")
    P(f"s_add_u32 s{S_WM}, s{S_WL}, s46")
    P(f"s_mul_i32 s{S_WL2}, s{S_PX}, {13 * XROW}")
    P(f"s_add_u32 s{S_WL2}, s{S_WL2}, {(G + 1) * XROW}")
    P(f"s_add_u32 s{S_WM2}, s{S_WL2}, s46")
    P(f"s_lshl_b32 s46, s{S_WAVE}, 6")
    P(f"s_lshl_b32 s{S_XL}, s{S_WAVE}, 10")
    P(f"s_lshl_b32 s47, s{S_STRIP}, 4")
    P("s_sub_u32 s47, s47, 1")
    t = V_T + 6
    P(f"v_add_u32 v{t}, s46, v{l}")
    P(f"v_mul_u32_u24 v{t+1}, 4682, v{t}")
    P(f"v_lshrrev_b32 v{t+1}, 16, v{t+1}")
    P(f"v_mul_u32_u24 v{t+2}, 14, v{t+1}")
    P(f"v_sub_u32 v{t+2}, v{t}, v{t+2}")
    P(f"v_add_u32 v{t+3}, s47, v{t+1}")
    P(f"v_cmp_gt_u32 vcc, 12, v{t+2}")
    P(f"v_mul_i32_i24 v{t+4}, 192, v{t+3}")
    P(f"v_lshl_add_u32 v{t+4}, v{t+2}, 4, v{t+4}")
    P(f"v_cndmask_b32 v{t+4}, v{V_T+5}, v{t+4}, vcc")
    P(f"v_cmp_gt_u32 vcc, 18, v{t+1}")
    P(f"s_add_u32 s{S_XR}, s{S_R0}, s{S_PY}")
    P(f"s_sub_u32 s{S_XR}, s{S_XR}, 1")
    P(f"v_cndmask_b32 v{t+4}, v{V_T+5}, v{t+4}, vcc")
    P(f"v_cmp_gt_u32 vcc, 224, v{t+3}")
    P(f"s_mul_i32 s{S_XG}, s{S_XR}, 43008")
    P(f"s_mov_b32 s{S_XSZ}, 9633792")
    P(f"v_cndmask_b32 v{V_X0}, v{V_T+5}, v{t+4}, vcc")
    P("s_waitcnt lgkmcnt(0)")
    stamp(P, args, 1)
    vm = VM(["code"] if args.codepf else [])
    def srd(r, lo, sz):
        P(f"s_mov_b32 s{r}, s{lo}")
        P(f"s_mov_b32 s{r+1}, s{lo+1}")
        P(f"s_mov_b32 s{r+2}, {sz}")
        P(f"s_mov_b32 s{r+3}, 0x20000")
    def warm():
        if args.warm:
            P(f"buffer_load_dword v{V_D}, v{V_T+3}, s[{S_W}:{S_W+3}], 0 offen")
            vm.add("warm")
    def biasloads():
        for j in range(3):
            P(f"buffer_load_dwordx4 {rng('v', OUTP+4*j, 4)}, v{V_BOFF}, s[{S_B}:{S_B+3}], 0 offen offset:{64*j}")
            vm.add("bias")
    srd(S_W, 6, 294912)
    if args.warm == 1: warm()
    for it in wdma(0): emit(P, vm, it)
    srd(S_B, 24, 192)
    biasloads()
    srd(S_X, 4, 9633792)

    def late_setup():
        q, p = V_T, V_T + 1
        L = []
        A = L.append
        A(f"v_and_b32 v{p}, 15, v{l}")
        A(f"v_add_u32 v{V_T+2}, s{S_PX}, v{p}")
        A(f"v_mul_u32_u24 v{V_T+2}, 224, v{V_T+2}")
        A(f"v_lshl_add_u32 v{V_T+2}, v{q}, 4, v{V_T+2}")
        A(f"s_mul_i32 s46, s{S_HALF}, {13*XROW}")
        A(f"v_add_u32 v{V_LDS}, s46, v{V_T+2}")
        A(f"v_mul_u32_u24 v{V_T+2}, 384, v{p}")
        A(f"v_lshl_add_u32 v{V_T+2}, v{q}, 4, v{V_T+2}")
        A(f"s_mul_i32 s46, s{S_PX}, 192")
        A(f"v_add_u32 v{V_OUT}, s46, v{V_T+2}")
        A(f"s_mul_i32 s46, s{S_HALF}, 13")
        A(f"s_add_u32 s46, s46, s{S_R0}")
        A("s_lshl_b32 s46, s46, 1")
        A(f"s_add_u32 s46, s46, s{S_PY}")
        A("s_mul_i32 s46, s46, 448")
        A(f"s_lshl_b32 s47, s{S_STRIP}, 5")
        A("s_add_u32 s46, s46, s47")
        A(f"s_mul_i32 s{S_OUT}, s46, 192")
        if args.share:
            A(f"s_mul_i32 s46, s{S_HALF}, {13*XROW}")
            A(f"s_sub_u32 s46, {12*XROW}, s46")
            A(f"v_add_u32 v{V_L12}, s46, v{V_LDS}")
            A(f"s_mul_i32 s46, s{S_HALF}, {13*2*448*192}")
            A(f"s_sub_u32 s46, {12*2*448*192}, s46")
            A(f"s_add_u32 s{S_OUT12}, s{S_OUT}, s46")
        A(f"v_and_b32 v{V_T+2}, 1, v{q}")
        A(f"v_mul_u32_u24 v{V_T+2}, 3080, v{V_T+2}")
        A(f"v_lshrrev_b32 v{V_T+4}, 1, v{q}")
        A(f"v_mul_u32_u24 v{V_T+4}, 1536, v{V_T+4}")
        A(f"v_add_u32 v{V_T+2}, v{V_T+2}, v{V_T+4}")
        A(f"v_bfe_u32 v{V_T+4}, v{l}, 2, 2")
        A(f"v_mul_u32_u24 v{V_T+4}, 192, v{V_T+4}")
        A(f"v_add_u32 v{V_T+2}, v{V_T+2}, v{V_T+4}")
        A(f"v_and_b32 v{V_T+4}, 3, v{l}")
        A(f"v_lshl_add_u32 v{V_T+2}, v{V_T+4}, 4, v{V_T+2}")
        A(f"v_add_u32 v{V_TR}, s{S_WL}, v{V_T+2}")
        A(f"v_add_u32 v{V_TR2}, s{S_WL2}, v{V_T+2}")
        return L

    PB, QB = BFR, BFR + 24
    def bfr(s, g):
        return BFR + 4 * (((s + 1) & 1) * G + g)
    assert 4 * G <= 24
    X = lambda rows: [f"x{r}" for r in rows]
    def pair(r): return [q for q in (r, 13 + r) if q <= 25]
    first = []
    for g in range(G): first += [1 + g, 14 + g]
    second = [0, 13]
    rsched = {int(k): [int(c) for c in v.split("+")] for k, v in (kv.split(":") for kv in args.rsched.split(","))}
    dsched = {int(k): [int(c) for c in v.split("+")] for k, v in (kv.split(":") for kv in args.dsched.split(","))}
    xsched = {int(k): [int(c) for c in v.split("+")] for k, v in (kv.split(":") for kv in args.xsched.split(","))}
    rstep = {c: s for s, v in rsched.items() for c in v}
    dstep = {c: s for s, v in dsched.items() for c in v}
    pre_w = [c for c in range(12) if c not in dstep]
    assert sorted(rstep) == list(range(12)) and pre_w[0] == 0
    for c in range(12):
        assert rstep[c] <= c
        if c in dstep: assert dstep[c] < rstep[c]
    for c2 in range(12):
        for c1 in range(c2):
            if slot_of(c1) == slot_of(c2): assert dstep[c2] >= rstep[c1] + 1, (c1, c2)
    xrows_rest = sorted(r for v in xsched.values() for r in v)
    assert xrows_rest == list(range(G + 1, 13)), xrows_rest
    nb = ((12 - G) * XROW) // WSLOT
    for s, v in xsched.items():
        for r in v:
            lo, hi = (r - G - 1) * XROW, (r - G) * XROW
            for b in range(nb):
                if lo < (b + 1) * WSLOT and hi > b * WSLOT:
                    for c in range(12):
                        if slot_of(c) == ("bor", b): assert s >= rstep[c] + 1, (r, s, b)
    bar_steps = sorted(set(rsched.keys()))
    if args.barsteps:
        bar_steps = [int(x) for x in args.barsteps.split(",")]
    def bar_between(lo, hi): return any(lo < b <= hi for b in bar_steps)
    for c2 in dstep:
        for c1 in range(c2):
            if slot_of(c1) == slot_of(c2): assert bar_between(rstep[c1], dstep[c2]), (c1, c2)
    for s_, v in xsched.items():
        for r in v:
            lo, hi = (r - G - 1) * XROW, (r - G) * XROW
            for b in range(nb):
                if lo < (b + 1) * WSLOT and hi > b * WSLOT:
                    for c in range(12):
                        if slot_of(c) == ("bor", b): assert bar_between(rstep[c], s_), (r, s_, c)

    for r in first:
        for it in xdma(r): emit(P, vm, it)
    if args.warm == 2: warm()
    for c in pre_w[1:2]:
        for it in wdma(c): emit(P, vm, it)
    if args.second < 0:
        for r in second:
            for it in xdma(r): emit(P, vm, it)
    for c in pre_w[2:]:
        for it in wdma(c): emit(P, vm, it)
    srd(S_O, 26, 38535168)
    for i in late_setup(): P(i)
    P(vm.wait(["bias"]))
    for j in range(3):
        for i in range(4):
            P(f"v_lshlrev_b32 v{BIAS+8*j+2*i}, 16, v{OUTP+4*j+i}")
            P(f"v_and_b32 v{BIAS+8*j+2*i+1}, 0xffff0000, v{OUTP+4*j+i}")
    stamp(P, args, 2)

    NM = 6 * G
    covered = set()
    for s in range(13):
        mf = []
        if s >= 1:
            P("s_waitcnt lgkmcnt(0)")
            if args.aorder and s <= 11:
                for t in range(6):
                    for g in range(G):
                        mf.append(mfma(ACC[g], t, s - 1, bfr(s - 1, g), s - 1 == 0))
            else:
                for g in range(G):
                    for t in range(6):
                        mf.append(mfma(ACC[g], t, s - 1, bfr(s - 1, g), s - 1 == 0))
        if s <= 11:
            rc = rsched.get(s, [])
            need = []
            if s in bar_steps:
                nxt = [b for b in bar_steps if b > s]
                upto = (nxt[0] if nxt else 13)
                pub = [c for c in range(12) if s <= rstep[c] < upto]
                need = [f"w{c}" for c in pub]
                covered |= set(pub)
                if s == 0: need += X(first)
                if s <= 6 and (not nxt or nxt[0] > 6): need += X(second)
            for c in rc: assert c in covered, (s, c)
            if s in bar_steps:
                if mf:
                    P(mf[0]); P(vm.wait(need)); P(mf[1]); P("s_barrier"); mf = mf[2:]
                else:
                    P(vm.wait(need)); P("s_barrier")
            if s == 0: stamp(P, args, 3)
            tap, ks = divmod(s, 3)
            a, b = tap >> 1, tap & 1
            breads = [bread(bfr(s, g), g + 1 - a, b, ks) for g in range(G)]
            trs = [x for c in rc for x in trreads(c)]
            dm = [x for c in dsched.get(s, []) for x in wdma(c)]
            xd = [x for r in ([0] if args.second == s else []) + xsched.get(s, []) for q in pair(r) for x in xdma(q)]
            if s == 0:
                for it in breads[:1] + trs + breads[1:] + dm + xd: emit(P, vm, it)
            else:
                rb = [[x] for x in breads + trs]
                db = dma_bundles(dm + xd) if (dm or xd) else []
                bl = mix(rb, db) if db else rb
                end = len(mf) - (args.tailgap if len(bl) <= len(mf) - args.tailgap else 0)
                if not db: end = max(len(rb), min(end, len(rb) + len(rb) // 2)) if rb else len(mf)
                spread_bundles(P, vm, mf, bl, 0, min(end, len(mf))) if bl else [P(m) for m in mf]
                stamp(P, args, 3 + s)
        else:
            pre = rowreads(QB, G)
            interleave(P, vm, mf[:9], pre)
            cv = cvts(ACC[0], 0) + cvts(ACC[0], 1) + cvts(ACC[0], 2)
            interleave(P, vm, mf[9:], cv)
    P(vm.wait(X(range(NXROWS))))
    P("s_barrier")
    P("L_main:")
    stamp(P, args, 15)

    def group(vm, accp, old, new, row, extra_first, e1, e2, tail=[]):
        mf = [mfma(accp, t, s, old + 4 * (s - 6), s == 6) for s in range(6, 12) for t in range(6)]
        interleave(P, vm, mf[:6], list(extra_first))
        interleave(P, vm, mf[6:], e1)
        mf = [mfma(accp, t, s, new + 4 * s, False) for s in range(0, 6) for t in range(6)]
        P("s_waitcnt lgkmcnt(0)")
        reads = rowreads(old, row + 2)
        interleave(P, vm, mf, mix(reads, e2) + list(tail))

    P("s_waitcnt lgkmcnt(0)")
    E = lambda a: epilogue(a, sf)
    st0 = [store(0, sf), store(1, sf), store(2, sf), outadv()]
    if "nost" in EXP: st0 = [outadv()]
    free = [0]
    pend = list(range(1, G))
    g = G
    old, new = QB, PB
    firstp = True
    npeel = G - 1 if args.even else (G - 1) // 2 + 1
    while True:
        cur = free.pop(0)
        if firstp:
            e1 = st0; e2 = E(ACC[pend[0]]); done = [pend.pop(0)]
            if not args.even and pend:
                e1 = st0 + E(ACC[done[0]]); e2 = E(ACC[pend[0]]); done.append(pend.pop(0))
            extra = rowreads(PB, G + 1)
        else:
            done = [pend.pop(0)]
            e1 = E(ACC[done[0]]); e2 = []
            if pend:
                done.append(pend.pop(0)); e2 = E(ACC[done[1]])
            extra = []
        last = (len(pend) == 0)
        tail = []
        if last:
            tail = [S(f"s_sub_u32 s{S_CNT}, s{S_NG}, {g+1}"), V(f"v_add_u32 v{V_LDS}, {(g+1)*XROW}, v{V_LDS}")]
        group(vm, ACC[cur], old, new, g, extra, e1, e2, tail)
        if firstp: stamp(P, args, 16)
        firstp = False
        free += done
        pend.append(cur)
        old, new = new, old
        g += 1
        if last: break
    assert len(pend) == 1
    A1 = ACC[pend[0]]; A0 = ACC[free[0]]
    assert g <= 10, g
    P("L_loop:")
    dec = [S(f"s_sub_u32 s{S_CNT}, s{S_CNT}, 1"), S(f"s_cmp_eq_u32 s{S_CNT}, 0")]
    def split(e):
        k = args.esplit
        return (e[:k], e[k:]) if k else (e, [])
    ea, eb = split(E(A1))
    group(None, A0, old, new, 0, [], ea, eb, tail=dec)
    P("s_cbranch_scc1 L_fin1")
    ea, eb = split(E(A0))
    group(None, A1, new, old, 1, [], ea, eb, tail=[V(f"v_add_u32 v{V_LDS}, {2*XROW}, v{V_LDS}")] + dec)
    P("s_cbranch_scc0 L_loop")
    def mid_reads():
        L = []
        for buf, row in ((PB, 0), (QB, 1)):
            for b in range(2):
                for ks in range(3):
                    off = row * XROW + (1 - b) * 224 + ks * 64
                    L.append(f"ds_read_b128 {rng('v', buf + 4 * (b * 3 + ks), 4)}, v{V_L12} offset:{off}")
        return L
    if args.share:
        for x in mid_reads(): P(x)
    else:
        P("s_nop 7")
    for it in E(A1): emit(P, None, it)
    P("s_branch L_done")
    P("L_fin1:")
    if args.share:
        for x in mid_reads(): P(x)
    else:
        P("s_nop 7")
    for it in E(A0): emit(P, None, it)
    P("L_done:")
    if args.share:
        AP = [a for a in ACC[:4] if a not in (A0, A1)][0]
        P(f"s_cmp_eq_u32 s{S_HALF}, 0")
        P("s_waitcnt lgkmcnt(0)")
        P("s_cbranch_scc0 L_mid1")
        for hf in range(2):
            if hf: P("L_mid1:")
            tl = [0, 1, 2, 3] if hf == 0 else [4, 5]
            for s_ in list(range(6, 12)) + list(range(0, 6)):
                bf = (PB + 4 * (s_ - 6)) if s_ >= 6 else (QB + 4 * s_)
                for i, t in enumerate(tl):
                    k, b = wreg(s_, t)
                    d = rng("v", AP + 4 * i, 4)
                    c = rng("v", BIAS + 4 * t, 4) if s_ == 6 else d
                    P(f"v_mfma_f32_16x16x32_bf16 {d}, {rng(k, b, 4)}, {rng('v', bf, 4)}, {c}")
            P("s_nop 7")
            o = OUTP
            cv = lambda dst, a: [P(f"v_cvt_pk_bf16_f32 v{dst}, v{a}, v{a+1}"), P(f"v_cvt_pk_bf16_f32 v{dst+1}, v{a+2}, v{a+3}")]
            for i in range(0, len(tl), 2):
                j = tl[i] >> 1
                oo = o + 4 * (i >> 1)
                cv(oo, AP + 4 * i); cv(oo + 2, AP + 4 * i + 4)
                P(f"buffer_store_dwordx4 {rng('v', oo, 4)}, v{V_OUT}, s[{S_O}:{S_O+3}], s{S_OUT12} offen offset:{64*j} {sf}".rstrip())
            if hf == 0: P("s_branch L_done2")
        P("L_done2:")
    T = V_D
    if args.probe:
        a, b, K, wg = [int(x) for x in args.probe.split(",")]
        stamp(P, args, 17)
        P("s_waitcnt vmcnt(0)")
        stamp(P, args, 18)
        P("s_waitcnt lgkmcnt(0)")
        P(f"s_cmp_eq_u32 s2, {wg}")
        P("s_cbranch_scc0 L_end")
        P(f"s_sub_u32 s46, s{S_STAMP+2*b}, s{S_STAMP+2*a}")
        P(f"s_mul_i32 s46, s46, {K}")
        P(f"s_min_u32 s46, s46, 20000")
        P(f"s_add_u32 s46, s46, s{S_STAMP+2*18}")
        P("L_spin:")
        P("s_memrealtime s[50:51]")
        P("s_waitcnt lgkmcnt(0)")
        P("s_sub_u32 s53, s46, s50")
        P("s_cmp_gt_i32 s53, 0")
        P("s_cbranch_scc1 L_spin")
    elif args.stamps:
        stamp(P, args, 17)
        P("s_waitcnt vmcnt(0)")
        stamp(P, args, 18)
        P("s_waitcnt lgkmcnt(0)")
        P(f"s_lshl_b32 s46, s2, 2"); P(f"s_add_u32 s46, s46, s{S_WAVE}"); P(f"s_lshl_b32 s46, s46, {8 if args.stamps >= 4 else 6}")
        P(f"v_mov_b32 v{T}, s46")
        P(f"v_cmp_eq_u32 vcc, 0, v{V_LANE}")
        P("s_and_saveexec_b64 s[54:55], vcc")
        for i in range(19 if args.stamps >= 4 else 8):
            P(f"v_mov_b32 v{T+2}, s{S_STAMP+2*i}"); P(f"v_mov_b32 v{T+3}, s{S_STAMP+2*i+1}")
            P(f"global_store_dwordx2 v{T}, v[{T+2}:{T+3}], s[58:59] offset:{8*i}")
            P("s_nop 1")
    P("L_end:")
    P("s_endpgm")
    ftr = f"""
.section .rodata,"a"
.p2align 6
.amdhsa_kernel {NAME}
  .amdhsa_next_free_vgpr 512
  .amdhsa_next_free_sgpr 102
  .amdhsa_accum_offset 256
  .amdhsa_group_segment_fixed_size 0
  .amdhsa_kernarg_size 48
  .amdhsa_user_sgpr_count 2
  .amdhsa_user_sgpr_kernarg_segment_ptr 1
  .amdhsa_system_sgpr_workgroup_id_x 1
.end_amdhsa_kernel
"""
    return hdr + P.text() + ftr

def parser():
    ap = argparse.ArgumentParser()
    ap.add_argument("-o", default="standalone__transposed_strided__vision.s")
    ap.add_argument("--G", type=int, default=4)
    ap.add_argument("--store-flags", default="sc0 sc1")
    ap.add_argument("--stamps", type=int, default=0)
    ap.add_argument("--warm", type=int, default=1)
    ap.add_argument("--exp", default="")
    ap.add_argument("--probe", default="")
    ap.add_argument("--codepf", type=int, default=1)
    ap.add_argument("--xflags", default="nt")
    ap.add_argument("--wflags", default="")
    ap.add_argument("--even", type=int, default=1)
    ap.add_argument("--esplit", type=int, default=0)
    ap.add_argument("--share", type=int, default=0)
    ap.add_argument("--second", type=int, default=-1)
    ap.add_argument("--aorder", type=int, default=0)
    ap.add_argument("--tailgap", type=int, default=4)
    ap.add_argument("--barsteps", default="0,1,2,3,4,5,6,8")
    ap.add_argument("--rsched", default="0:0,1:1,2:2+3,3:4+5,4:6,5:7,6:8,7:9,8:10,9:11")
    ap.add_argument("--dsched", default="1:2+3+4,2:5+6,3:7+8,4:9,5:10,6:11")
    ap.add_argument("--xsched", default="4:5+6+7,5:8+9+10,6:11+12")
    ap.add_argument("--slots", default="r0,r1,b0,b1,b2,b3,r2,r3,r0,r1,r2,r3")
    return ap

if __name__ == "__main__":
    args = parser().parse_args()
    open(args.o, "w").write(gen(args))
```

```python
import sys, argparse

NAME = "standalone__transposed_strided__vision_kernel"

XROW = 4096
NXROWS = 26
WB = NXROWS * XROW
WSLOT = 6160
NRING = 4
WPH = WSLOT * NRING
LDS_BYTES = WB + 2 * WPH

def wreg(s, t):
    f = s * 6 + t
    if f < 64:
        return "a", 4 * f
    return "v", 224 + 4 * (f - 64)
def rng(kind, base, n):
    return f"{kind}[{base}:{base+n-1}]"
ACC = [0, 24, 48, 72, 96]
BIAS = 120
BFR = 144
OUTP = 192
V_LDS, V_OUT, V_TR, V_TR2 = 204, 205, 206, 207
V_W0, V_W1, V_W2 = 208, 209, 210
V_X0 = 211
V_L12 = 214
S_OUT12 = 57
V_BOFF = 212
V_LANE = 213
V_T = 96
V_D = 216

S_X, S_W, S_O, S_B = 8, 12, 16, 20
S_WAVE, S_PX, S_HALF, S_PY, S_STRIP, S_R0, S_NG, S_OUT, S_WG, S_T, S_WL, S_XR = 28, 29, 30, 31, 32, 33, 34, 35, 36, 37, 38, 39
S_T2, S_CNT, S_XSZ, S_XL, S_XG, S_WM, S_WM2, S_WL2 = 40, 41, 42, 43, 44, 48, 49, 56
S_STAMP = 60

class Prog:
    def __init__(self):
        self.L = []
    def __call__(self, s):
        if s is not None:
            self.L.append(s)
    def text(self):
        return "\n".join(("" if l.endswith(":") else "    ") + l for l in self.L) + "\n"

class VM:
    def __init__(self, ops=None):
        self.ops = list(ops) if ops else []
    def add(self, tag):
        self.ops.append(tag)
    def wait(self, tags):
        idx = [i for i, t in enumerate(self.ops) if t in tags]
        if not idx: return None
        n = len(self.ops) - 1 - max(idx)
        assert n <= 63, n
        return f"s_waitcnt vmcnt({n})"

C_S, C_V, C_DS, C_DMA, C_ST = 4, 4, 8, 8, 8
def S(x): return (x, None, C_S)
def V(x): return (x, None, C_V)
def D(x): return (x, None, C_DS)
EXP = ""; XFL = "nt"; WFL = ""; GG = 5

SLOTS = None
def slot_of(c):
    return SLOTS[c]

def mfma(acc, t, s, bf, first):
    k, b = wreg(s, t)
    d = rng("v", acc + 4 * t, 4)
    c = rng("v", BIAS + 4 * t, 4) if first else d
    return f"v_mfma_f32_16x16x32_bf16 {d}, {rng(k, b, 4)}, {rng('v', bf, 4)}, {c}"

def bread(bf, row, b, ks):
    off = row * XROW + (1 - b) * 224 + ks * 64
    assert off < 65536
    return D(f"ds_read_b128 {rng('v', bf, 4)}, v{V_LDS} offset:{off}")

def rowreads(buf, row):
    return [bread(buf + 4 * (b * 3 + ks), row, b, ks) for b in range(2) for ks in range(3)]

def trreads(c):
    L = []
    kind, slot = slot_of(c)
    va = V_TR if kind == "ring" else V_TR2
    for t in range(6):
        j, tb = t >> 1, t & 1
        k, b = wreg(c, t)
        for h in range(2):
            off = slot * WSLOT + h * 768 + j * 64 + tb * 8
            L.append(D(f"ds_read_b64_tr_b16 {rng(k, b + 2 * h, 2)}, v{va} offset:{off}"))
    return L

def wdma(c):
    kind, slot = slot_of(c)
    sm = S_WM if kind == "ring" else S_WM2
    tap, ks = divmod(c, 3)
    a, b = tap >> 1, tap & 1
    goff = (2 * a * 4 + 2 * b) * 18432 + ks * 6144
    tag = f"w{c}"
    def ld(v, off):
        o = f" offset:{off}" if off else ""
        return (f"buffer_load_dwordx4 v{v}, s[{S_W}:{S_W+3}], s{S_T} offen{o} {WFL} lds".replace("  ", " "), tag, C_DMA)
    return [
        S(f"s_add_u32 m0, s{sm}, {slot * WSLOT}"),
        S(f"s_add_u32 s{S_T}, s{S_WG}, {goff}"),
        ld(V_W0, 0), ld(V_W1, 1024), ld(V_W2, 2048),
    ]

def xdma(rho):
    tag = f"x{rho}"
    L = []
    chk = rho in (0, 24, 25)
    if chk:
        L.append(S(f"s_add_u32 s{S_T2}, s{S_XR}, {rho}"))
        L.append(S(f"s_cmp_lt_u32 s{S_T2}, 224"))
        L.append(S(f"s_cselect_b32 s{S_X+2}, s{S_XSZ}, 0"))
    L.append(S(f"s_add_u32 m0, s{S_XL}, {rho * XROW}"))
    L.append(S(f"s_add_u32 s{S_T2}, s{S_XG}, {rho * 43008}"))
    L.append((f"buffer_load_dwordx4 v{V_X0}, s[{S_X}:{S_X+3}], s{S_T2} offen {XFL} lds".replace("  ", " "), tag, C_DMA))
    if chk:
        L.append(S(f"s_mov_b32 s{S_X+2}, s{S_XSZ}"))
    return L

def cvts(acc, j):
    o = OUTP + 4 * j
    t0, t1 = acc + 8 * j, acc + 8 * j + 4
    return [V(f"v_cvt_pk_bf16_f32 v{o}, v{t0}, v{t0+1}"), V(f"v_cvt_pk_bf16_f32 v{o+1}, v{t0+2}, v{t0+3}"),
            V(f"v_cvt_pk_bf16_f32 v{o+2}, v{t1}, v{t1+1}"), V(f"v_cvt_pk_bf16_f32 v{o+3}, v{t1+2}, v{t1+3}")]
def store(j, sf):
    o = OUTP + 4 * j
    return (f"buffer_store_dwordx4 {rng('v', o, 4)}, v{V_OUT}, s[{S_O}:{S_O+3}], s{S_OUT} offen offset:{64*j} {sf}".rstrip(), "st", C_ST)
def outadv():
    return S(f"s_add_u32 s{S_OUT}, s{S_OUT}, {2*448*192}")
def epilogue(acc, sf):
    L = []
    for j in range(3):
        L += cvts(acc, j) + [store(j, sf)]
    L.append(outadv())
    if "nost" in EXP: L = [x for x in L if x[1] != "st"]
    return L

def emit(P, vm, item):
    txt, tag = item[0], item[1]
    P(txt)
    if tag is not None and vm is not None:
        vm.add(tag)

def pack(fillers, budget=8):
    out = []; cur = []; c = 0
    for it in fillers:
        if cur and c + it[2] > budget:
            out.append(cur); cur = []; c = 0
        cur.append(it); c += it[2]
    if cur: out.append(cur)
    return out

def spread_bundles(P, vm, mfmas, bundles, start=0, end=None):
    n = len(mfmas)
    if end is None: end = n
    gaps = end - start
    at = {}
    for i, b in enumerate(bundles):
        g = start + (i * gaps) // len(bundles)
        at.setdefault(g, []).extend(b)
    for i, m in enumerate(mfmas):
        P(m)
        for it in at.get(i, []):
            emit(P, vm, it)

def interleave(P, vm, mfmas, fillers, start=0, end=None):
    bundles = pack(fillers)
    if not bundles:
        for m in mfmas: P(m)
        return
    spread_bundles(P, vm, mfmas, bundles, start, end)

def mix(a, b):
    out = []; i = j = 0
    while i < len(a) or j < len(b):
        if j >= len(b) or (i < len(a) and i * len(b) <= j * len(a)):
            out.append(a[i]); i += 1
        else:
            out.append(b[j]); j += 1
    return out

def dma_bundles(items):
    out = []; cur = []
    for it in items:
        cur.append(it)
        if it[1] is not None:
            out.append(cur); cur = []
    if cur:
        out[-1] = out[-1] + cur
    return out

COARSE = {0: 0, 1: 1, 2: 2, 3: 3, 14: 7, 15: 4, 17: 5, 18: 6}
def stamp(P, args, idx):
    if args.stamps in (1, 3):
        if idx in COARSE: i = COARSE[idx]; P(f"s_memrealtime s[{S_STAMP+2*i}:{S_STAMP+2*i+1}]")
    elif args.stamps == 4:
        P(f"s_memtime s[{S_STAMP+2*idx}:{S_STAMP+2*idx+1}]")
    elif args.stamps == 5:
        P(f"s_memrealtime s[{S_STAMP+2*idx}:{S_STAMP+2*idx+1}]")

def gen(args):
    G = args.G
    sf = args.store_flags
    if args.probe: args.stamps = 5
    global EXP, XFL, WFL, GG
    EXP = args.exp; XFL = args.xflags; WFL = args.wflags; GG = G
    global SLOTS
    SLOTS = [("ring" if t[0] == "r" else "bor", int(t[1:])) for t in args.slots.split(",")]
    assert all(k < ((12 - G) * XROW) // WSLOT for kind, k in SLOTS if kind == "bor")
    P = Prog()
    hdr = f"""; Transposed conv 4x4 stride 2, x(1,224,224,96) bf16 -> out(1,448,448,96) bf16, gfx950.
; One workgroup = (16-pixel-wide strip x 24/25 input rows, output row parity py); wave = (px, half).
; Each wave keeps the 4 taps of its phase (384 x 96 bf16) in 288 registers and streams pixel rows from LDS.
; @launch grid=(256,1,1) block=(256,1,1) lds={LDS_BYTES}
.amdgcn_target "amdgcn-amd-amdhsa--gfx950"
.text
.globl {NAME}
.p2align 8
.type {NAME},@function
{NAME}:
"""
    stamp(P, args, 0)
    P("s_load_dwordx4 s[4:7], s[0:1], 0")
    P("s_load_dwordx4 s[24:27], s[0:1], 16")
    if args.stamps and not args.probe:
        P(f"s_load_dwordx2 s[58:59], s[0:1], {32 if args.stamps == 3 else 40}")
    P("s_and_b32 s3, s2, 7")
    P("s_lshr_b32 s45, s2, 3")
    P(f"s_and_b32 s{S_PY}, s45, 1")
    P("s_lshr_b32 s46, s45, 1")
    P("s_lshl_b32 s3, s3, 4")
    P("s_add_u32 s3, s3, s46")
    P("s_cmp_ge_u32 s2, 256")
    P("s_cbranch_scc1 L_end")
    P("s_cmp_ge_u32 s3, 126")
    P("s_cbranch_scc1 L_end")
    l = V_LANE
    P(f"v_lshrrev_b32 v{V_T}, 6, v0")
    P(f"v_and_b32 v{l}, 63, v0")
    P(f"s_mul_i32 s{S_STRIP}, s3, 7282")
    P(f"v_readfirstlane_b32 s{S_WAVE}, v{V_T}")
    P(f"s_lshr_b32 s{S_STRIP}, s{S_STRIP}, 16")
    P(f"s_mul_i32 s46, s{S_STRIP}, 9")
    P("s_sub_u32 s46, s3, s46")
    P(f"s_mul_i32 s{S_R0}, s46, 25")
    P(f"s_and_b32 s{S_PX}, s{S_WAVE}, 1")
    P(f"s_lshr_b32 s{S_HALF}, s{S_WAVE}, 1")
    P("s_cmp_lt_u32 s46, 8")
    P(f"s_cselect_b32 s{S_NG}, 12, 11")
    P(f"s_cmp_eq_u32 s{S_HALF}, 0")
    P(f"s_cselect_b32 s{S_NG}, {12 if args.share else 13}, s{S_NG}")
    P(f"s_lshl_b32 s52, s45, 2")
    P(f"s_add_u32 s52, s52, s{S_WAVE}")
    if args.codepf:
        P("s_getpc_b64 s[50:51]")
        P("L_pc:")
        P(f"s_lshl_b32 s53, s52, 7")
        P(f"v_mov_b32 v{V_D+2}, s53")
        P(f"s_cmp_lt_u32 s53, L_end-L_pc")
        P(f"s_cbranch_scc0 L_nopf")
        P(f"global_load_dword v{V_D+3}, v{V_D+2}, s[50:51]")
        P(f"L_nopf:")
    P("s_mul_i32 s47, s52, 2304")
    P(f"v_lshlrev_b32 v{V_T+3}, 7, v{l}")
    P(f"v_add_u32 v{V_T+3}, s47, v{V_T+3}")
    P(f"v_cmp_gt_u32 vcc, 18, v{l}")
    P(f"v_mov_b32 v{V_T+5}, 0x80000000")
    P(f"v_lshrrev_b32 v{V_T}, 4, v{l}")
    P(f"v_cndmask_b32 v{V_T+3}, v{V_T+5}, v{V_T+3}, vcc")
    P(f"v_lshlrev_b32 v{V_BOFF}, 4, v{V_T}")
    P(f"s_mul_i32 s46, s{S_HALF}, 1536")
    P(f"v_lshlrev_b32 v{V_W0}, 4, v{l}")
    P(f"v_lshrrev_b32 v{V_T+2}, 5, v{l}")
    P(f"v_add_u32 v{V_W0}, s46, v{V_W0}")
    P(f"v_mul_u32_u24 v{V_T+2}, 1536, v{V_T+2}")
    P(f"v_add_u32 v{V_W2}, 1536, v{V_W0}")
    P(f"v_add_u32 v{V_W1}, v{V_W0}, v{V_T+2}")
    P(f"s_sub_u32 s46, 1, s{S_PY}")
    P("s_lshl_b32 s46, s46, 2")
    P(f"s_sub_u32 s47, 1, s{S_PX}")
    P("s_add_u32 s46, s46, s47")
    P(f"s_mul_i32 s{S_WG}, s46, 18432")
    P(f"s_mul_i32 s{S_WL}, s{S_PX}, {WPH}")
    P(f"s_add_u32 s{S_WL}, s{S_WL}, {WB}")
    P(f"s_mul_i32 s46, s{S_HALF}, 3080")
    P(f"s_add_u32 s{S_WM}, s{S_WL}, s46")
    P(f"s_mul_i32 s{S_WL2}, s{S_PX}, {13 * XROW}")
    P(f"s_add_u32 s{S_WL2}, s{S_WL2}, {(G + 1) * XROW}")
    P(f"s_add_u32 s{S_WM2}, s{S_WL2}, s46")
    P(f"s_lshl_b32 s46, s{S_WAVE}, 6")
    P(f"s_lshl_b32 s{S_XL}, s{S_WAVE}, 10")
    P(f"s_lshl_b32 s47, s{S_STRIP}, 4")
    P("s_sub_u32 s47, s47, 1")
    t = V_T + 6
    P(f"v_add_u32 v{t}, s46, v{l}")
    P(f"v_mul_u32_u24 v{t+1}, 4682, v{t}")
    P(f"v_lshrrev_b32 v{t+1}, 16, v{t+1}")
    P(f"v_mul_u32_u24 v{t+2}, 14, v{t+1}")
    P(f"v_sub_u32 v{t+2}, v{t}, v{t+2}")
    P(f"v_add_u32 v{t+3}, s47, v{t+1}")
    P(f"v_cmp_gt_u32 vcc, 12, v{t+2}")
    P(f"v_mul_i32_i24 v{t+4}, 192, v{t+3}")
    P(f"v_lshl_add_u32 v{t+4}, v{t+2}, 4, v{t+4}")
    P(f"v_cndmask_b32 v{t+4}, v{V_T+5}, v{t+4}, vcc")
    P(f"v_cmp_gt_u32 vcc, 18, v{t+1}")
    P(f"s_add_u32 s{S_XR}, s{S_R0}, s{S_PY}")
    P(f"s_sub_u32 s{S_XR}, s{S_XR}, 1")
    P(f"v_cndmask_b32 v{t+4}, v{V_T+5}, v{t+4}, vcc")
    P(f"v_cmp_gt_u32 vcc, 224, v{t+3}")
    P(f"s_mul_i32 s{S_XG}, s{S_XR}, 43008")
    P(f"s_mov_b32 s{S_XSZ}, 9633792")
    P(f"v_cndmask_b32 v{V_X0}, v{V_T+5}, v{t+4}, vcc")
    P("s_waitcnt lgkmcnt(0)")
    stamp(P, args, 1)
    vm = VM(["code"] if args.codepf else [])
    def srd(r, lo, sz):
        P(f"s_mov_b32 s{r}, s{lo}")
        P(f"s_mov_b32 s{r+1}, s{lo+1}")
        P(f"s_mov_b32 s{r+2}, {sz}")
        P(f"s_mov_b32 s{r+3}, 0x20000")
    def warm():
        if args.warm:
            P(f"buffer_load_dword v{V_D}, v{V_T+3}, s[{S_W}:{S_W+3}], 0 offen")
            vm.add("warm")
    def biasloads():
        for j in range(3):
            P(f"buffer_load_dwordx4 {rng('v', OUTP+4*j, 4)}, v{V_BOFF}, s[{S_B}:{S_B+3}], 0 offen offset:{64*j}")
            vm.add("bias")
    srd(S_W, 6, 294912)
    if args.warm == 1: warm()
    for it in wdma(0): emit(P, vm, it)
    srd(S_B, 24, 192)
    biasloads()
    srd(S_X, 4, 9633792)

    def late_setup():
        q, p = V_T, V_T + 1
        L = []
        A = L.append
        A(f"v_and_b32 v{p}, 15, v{l}")
        A(f"v_add_u32 v{V_T+2}, s{S_PX}, v{p}")
        A(f"v_mul_u32_u24 v{V_T+2}, 224, v{V_T+2}")
        A(f"v_lshl_add_u32 v{V_T+2}, v{q}, 4, v{V_T+2}")
        A(f"s_mul_i32 s46, s{S_HALF}, {13*XROW}")
        A(f"v_add_u32 v{V_LDS}, s46, v{V_T+2}")
        A(f"v_mul_u32_u24 v{V_T+2}, 384, v{p}")
        A(f"v_lshl_add_u32 v{V_T+2}, v{q}, 4, v{V_T+2}")
        A(f"s_mul_i32 s46, s{S_PX}, 192")
        A(f"v_add_u32 v{V_OUT}, s46, v{V_T+2}")
        A(f"s_mul_i32 s46, s{S_HALF}, 13")
        A(f"s_add_u32 s46, s46, s{S_R0}")
        A("s_lshl_b32 s46, s46, 1")
        A(f"s_add_u32 s46, s46, s{S_PY}")
        A("s_mul_i32 s46, s46, 448")
        A(f"s_lshl_b32 s47, s{S_STRIP}, 5")
        A("s_add_u32 s46, s46, s47")
        A(f"s_mul_i32 s{S_OUT}, s46, 192")
        if args.share:
            A(f"s_mul_i32 s46, s{S_HALF}, {13*XROW}")
            A(f"s_sub_u32 s46, {12*XROW}, s46")
            A(f"v_add_u32 v{V_L12}, s46, v{V_LDS}")
            A(f"s_mul_i32 s46, s{S_HALF}, {13*2*448*192}")
            A(f"s_sub_u32 s46, {12*2*448*192}, s46")
            A(f"s_add_u32 s{S_OUT12}, s{S_OUT}, s46")
        A(f"v_and_b32 v{V_T+2}, 1, v{q}")
        A(f"v_mul_u32_u24 v{V_T+2}, 3080, v{V_T+2}")
        A(f"v_lshrrev_b32 v{V_T+4}, 1, v{q}")
        A(f"v_mul_u32_u24 v{V_T+4}, 1536, v{V_T+4}")
        A(f"v_add_u32 v{V_T+2}, v{V_T+2}, v{V_T+4}")
        A(f"v_bfe_u32 v{V_T+4}, v{l}, 2, 2")
        A(f"v_mul_u32_u24 v{V_T+4}, 192, v{V_T+4}")
        A(f"v_add_u32 v{V_T+2}, v{V_T+2}, v{V_T+4}")
        A(f"v_and_b32 v{V_T+4}, 3, v{l}")
        A(f"v_lshl_add_u32 v{V_T+2}, v{V_T+4}, 4, v{V_T+2}")
        A(f"v_add_u32 v{V_TR}, s{S_WL}, v{V_T+2}")
        A(f"v_add_u32 v{V_TR2}, s{S_WL2}, v{V_T+2}")
        return L

    PB, QB = BFR, BFR + 24
    def bfr(s, g):
        return BFR + 4 * (((s + 1) & 1) * G + g)
    assert 4 * G <= 24
    X = lambda rows: [f"x{r}" for r in rows]
    def pair(r): return [q for q in (r, 13 + r) if q <= 25]
    first = []
    for g in range(G): first += [1 + g, 14 + g]
    second = [0, 13]
    rsched = {int(k): [int(c) for c in v.split("+")] for k, v in (kv.split(":") for kv in args.rsched.split(","))}
    dsched = {int(k): [int(c) for c in v.split("+")] for k, v in (kv.split(":") for kv in args.dsched.split(","))}
    xsched = {int(k): [int(c) for c in v.split("+")] for k, v in (kv.split(":") for kv in args.xsched.split(","))}
    rstep = {c: s for s, v in rsched.items() for c in v}
    dstep = {c: s for s, v in dsched.items() for c in v}
    pre_w = [c for c in range(12) if c not in dstep]
    assert sorted(rstep) == list(range(12)) and pre_w[0] == 0
    for c in range(12):
        assert rstep[c] <= c
        if c in dstep: assert dstep[c] < rstep[c]
    for c2 in range(12):
        for c1 in range(c2):
            if slot_of(c1) == slot_of(c2): assert dstep[c2] >= rstep[c1] + 1, (c1, c2)
    xrows_rest = sorted(r for v in xsched.values() for r in v)
    assert xrows_rest == list(range(G + 1, 13)), xrows_rest
    nb = ((12 - G) * XROW) // WSLOT
    for s, v in xsched.items():
        for r in v:
            lo, hi = (r - G - 1) * XROW, (r - G) * XROW
            for b in range(nb):
                if lo < (b + 1) * WSLOT and hi > b * WSLOT:
                    for c in range(12):
                        if slot_of(c) == ("bor", b): assert s >= rstep[c] + 1, (r, s, b)
    bar_steps = sorted(set(rsched.keys()))
    if args.barsteps:
        bar_steps = [int(x) for x in args.barsteps.split(",")]
    def bar_between(lo, hi): return any(lo < b <= hi for b in bar_steps)
    for c2 in dstep:
        for c1 in range(c2):
            if slot_of(c1) == slot_of(c2): assert bar_between(rstep[c1], dstep[c2]), (c1, c2)
    for s_, v in xsched.items():
        for r in v:
            lo, hi = (r - G - 1) * XROW, (r - G) * XROW
            for b in range(nb):
                if lo < (b + 1) * WSLOT and hi > b * WSLOT:
                    for c in range(12):
                        if slot_of(c) == ("bor", b): assert bar_between(rstep[c], s_), (r, s_, c)

    for r in first:
        for it in xdma(r): emit(P, vm, it)
    if args.warm == 2: warm()
    for c in pre_w[1:2]:
        for it in wdma(c): emit(P, vm, it)
    if args.second < 0:
        for r in second:
            for it in xdma(r): emit(P, vm, it)
    for c in pre_w[2:]:
        for it in wdma(c): emit(P, vm, it)
    srd(S_O, 26, 38535168)
    for i in late_setup(): P(i)
    P(vm.wait(["bias"]))
    for j in range(3):
        for i in range(4):
            P(f"v_lshlrev_b32 v{BIAS+8*j+2*i}, 16, v{OUTP+4*j+i}")
            P(f"v_and_b32 v{BIAS+8*j+2*i+1}, 0xffff0000, v{OUTP+4*j+i}")
    stamp(P, args, 2)

    NM = 6 * G
    covered = set()
    for s in range(13):
        mf = []
        if s >= 1:
            P("s_waitcnt lgkmcnt(0)")
            if args.aorder and s <= 11:
                for t in range(6):
                    for g in range(G):
                        mf.append(mfma(ACC[g], t, s - 1, bfr(s - 1, g), s - 1 == 0))
            else:
                for g in range(G):
                    for t in range(6):
                        mf.append(mfma(ACC[g], t, s - 1, bfr(s - 1, g), s - 1 == 0))
        if s <= 11:
            rc = rsched.get(s, [])
            need = []
            if s in bar_steps:
                nxt = [b for b in bar_steps if b > s]
                upto = (nxt[0] if nxt else 13)
                pub = [c for c in range(12) if s <= rstep[c] < upto]
                need = [f"w{c}" for c in pub]
                covered |= set(pub)
                if s == 0: need += X(first)
                if s <= 6 and (not nxt or nxt[0] > 6): need += X(second)
            for c in rc: assert c in covered, (s, c)
            if s in bar_steps:
                if mf:
                    P(mf[0]); P(vm.wait(need)); P(mf[1]); P("s_barrier"); mf = mf[2:]
                else:
                    P(vm.wait(need)); P("s_barrier")
            if s == 0: stamp(P, args, 3)
            tap, ks = divmod(s, 3)
            a, b = tap >> 1, tap & 1
            breads = [bread(bfr(s, g), g + 1 - a, b, ks) for g in range(G)]
            trs = [x for c in rc for x in trreads(c)]
            dm = [x for c in dsched.get(s, []) for x in wdma(c)]
            xd = [x for r in ([0] if args.second == s else []) + xsched.get(s, []) for q in pair(r) for x in xdma(q)]
            if s == 0:
                for it in breads[:1] + trs + breads[1:] + dm + xd: emit(P, vm, it)
            else:
                rb = [[x] for x in breads + trs]
                db = dma_bundles(dm + xd) if (dm or xd) else []
                bl = mix(rb, db) if db else rb
                end = len(mf) - (args.tailgap if len(bl) <= len(mf) - args.tailgap else 0)
                if not db: end = max(len(rb), min(end, len(rb) + len(rb) // 2)) if rb else len(mf)
                spread_bundles(P, vm, mf, bl, 0, min(end, len(mf))) if bl else [P(m) for m in mf]
                stamp(P, args, 3 + s)
        else:
            pre = rowreads(QB, G)
            interleave(P, vm, mf[:9], pre)
            cv = cvts(ACC[0], 0) + cvts(ACC[0], 1) + cvts(ACC[0], 2)
            interleave(P, vm, mf[9:], cv)
    P(vm.wait(X(range(NXROWS))))
    P("s_barrier")
    P("L_main:")
    stamp(P, args, 15)

    def group(vm, accp, old, new, row, extra_first, e1, e2, tail=[]):
        if args.chain:
            mf = [mfma(accp, t, s, old + 4 * (s - 6), s == 6) for t in range(6) for s in range(6, 12)]
        else:
            mf = [mfma(accp, t, s, old + 4 * (s - 6), s == 6) for s in range(6, 12) for t in range(6)]
        interleave(P, vm, mf[:6], list(extra_first))
        interleave(P, vm, mf[6:], e1)
        if args.chain:
            mf = [mfma(accp, t, s, new + 4 * s, False) for t in range(6) for s in range(0, 6)]
        else:
            mf = [mfma(accp, t, s, new + 4 * s, False) for s in range(0, 6) for t in range(6)]
        P("s_waitcnt lgkmcnt(0)")
        reads = rowreads(old, row + 2)
        interleave(P, vm, mf, mix(reads, e2) + list(tail))

    P("s_waitcnt lgkmcnt(0)")
    E = lambda a: epilogue(a, sf)
    st0 = [store(0, sf), store(1, sf), store(2, sf), outadv()]
    if "nost" in EXP: st0 = [outadv()]
    free = [0]
    pend = list(range(1, G))
    g = G
    old, new = QB, PB
    firstp = True
    npeel = G - 1 if args.even else (G - 1) // 2 + 1
    while True:
        cur = free.pop(0)
        if firstp:
            e1 = st0; e2 = E(ACC[pend[0]]); done = [pend.pop(0)]
            if not args.even and pend:
                e1 = st0 + E(ACC[done[0]]); e2 = E(ACC[pend[0]]); done.append(pend.pop(0))
            extra = rowreads(PB, G + 1)
        else:
            done = [pend.pop(0)]
            e1 = E(ACC[done[0]]); e2 = []
            if pend:
                done.append(pend.pop(0)); e2 = E(ACC[done[1]])
            extra = []
        last = (len(pend) == 0)
        tail = []
        if last:
            tail = [S(f"s_sub_u32 s{S_CNT}, s{S_NG}, {g+1}"), V(f"v_add_u32 v{V_LDS}, {(g+1)*XROW}, v{V_LDS}")]
        group(vm, ACC[cur], old, new, g, extra, e1, e2, tail)
        if firstp: stamp(P, args, 16)
        firstp = False
        free += done
        pend.append(cur)
        old, new = new, old
        g += 1
        if last: break
    assert len(pend) == 1
    A1 = ACC[pend[0]]; A0 = ACC[free[0]]
    assert g <= 10, g
    P("L_loop:")
    dec = [S(f"s_sub_u32 s{S_CNT}, s{S_CNT}, 1"), S(f"s_cmp_eq_u32 s{S_CNT}, 0")]
    def split(e):
        k = args.esplit
        return (e[:k], e[k:]) if k else (e, [])
    ea, eb = split(E(A1))
    group(None, A0, old, new, 0, [], ea, eb, tail=dec)
    P("s_cbranch_scc1 L_fin1")
    ea, eb = split(E(A0))
    group(None, A1, new, old, 1, [], ea, eb, tail=[V(f"v_add_u32 v{V_LDS}, {2*XROW}, v{V_LDS}")] + dec)
    P("s_cbranch_scc0 L_loop")
    def mid_reads():
        L = []
        for buf, row in ((PB, 0), (QB, 1)):
            for b in range(2):
                for ks in range(3):
                    off = row * XROW + (1 - b) * 224 + ks * 64
                    L.append(f"ds_read_b128 {rng('v', buf + 4 * (b * 3 + ks), 4)}, v{V_L12} offset:{off}")
        return L
    if args.share:
        for x in mid_reads(): P(x)
    else:
        P("s_nop 7")
    for it in E(A1): emit(P, None, it)
    P("s_branch L_done")
    P("L_fin1:")
    if args.share:
        for x in mid_reads(): P(x)
    else:
        P("s_nop 7")
    for it in E(A0): emit(P, None, it)
    P("L_done:")
    if args.share:
        AP = [a for a in ACC[:4] if a not in (A0, A1)][0]
        P(f"s_cmp_eq_u32 s{S_HALF}, 0")
        P("s_waitcnt lgkmcnt(0)")
        P("s_cbranch_scc0 L_mid1")
        for hf in range(2):
            if hf: P("L_mid1:")
            tl = [0, 1, 2, 3] if hf == 0 else [4, 5]
            order = [(s_, i, t) for s_ in list(range(6, 12)) + list(range(0, 6)) for i, t in enumerate(tl)]
            if args.chain:
                order = [(s_, i, t) for i, t in enumerate(tl) for s_ in list(range(6, 12)) + list(range(0, 6))]
            for s_, i, t in order:
                bf = (PB + 4 * (s_ - 6)) if s_ >= 6 else (QB + 4 * s_)
                if True:
                    k, b = wreg(s_, t)
                    d = rng("v", AP + 4 * i, 4)
                    c = rng("v", BIAS + 4 * t, 4) if s_ == 6 else d
                    P(f"v_mfma_f32_16x16x32_bf16 {d}, {rng(k, b, 4)}, {rng('v', bf, 4)}, {c}")
            P("s_nop 7")
            o = OUTP
            cv = lambda dst, a: [P(f"v_cvt_pk_bf16_f32 v{dst}, v{a}, v{a+1}"), P(f"v_cvt_pk_bf16_f32 v{dst+1}, v{a+2}, v{a+3}")]
            for i in range(0, len(tl), 2):
                j = tl[i] >> 1
                oo = o + 4 * (i >> 1)
                cv(oo, AP + 4 * i); cv(oo + 2, AP + 4 * i + 4)
                P(f"buffer_store_dwordx4 {rng('v', oo, 4)}, v{V_OUT}, s[{S_O}:{S_O+3}], s{S_OUT12} offen offset:{64*j} {sf}".rstrip())
            if hf == 0: P("s_branch L_done2")
        P("L_done2:")
    T = V_D
    if args.probe:
        a, b, K, wg = [int(x) for x in args.probe.split(",")]
        stamp(P, args, 17)
        P("s_waitcnt vmcnt(0)")
        stamp(P, args, 18)
        P("s_waitcnt lgkmcnt(0)")
        P(f"s_cmp_eq_u32 s2, {wg}")
        P("s_cbranch_scc0 L_end")
        P(f"s_sub_u32 s46, s{S_STAMP+2*b}, s{S_STAMP+2*a}")
        P(f"s_mul_i32 s46, s46, {K}")
        P(f"s_min_u32 s46, s46, 20000")
        P(f"s_add_u32 s46, s46, s{S_STAMP+2*18}")
        P("L_spin:")
        P("s_memrealtime s[50:51]")
        P("s_waitcnt lgkmcnt(0)")
        P("s_sub_u32 s53, s46, s50")
        P("s_cmp_gt_i32 s53, 0")
        P("s_cbranch_scc1 L_spin")
    elif args.stamps:
        stamp(P, args, 17)
        P("s_waitcnt vmcnt(0)")
        stamp(P, args, 18)
        P("s_waitcnt lgkmcnt(0)")
        P(f"s_lshl_b32 s46, s2, 2"); P(f"s_add_u32 s46, s46, s{S_WAVE}"); P(f"s_lshl_b32 s46, s46, {8 if args.stamps >= 4 else 6}")
        P(f"v_mov_b32 v{T}, s46")
        P(f"v_cmp_eq_u32 vcc, 0, v{V_LANE}")
        P("s_and_saveexec_b64 s[54:55], vcc")
        for i in range(19 if args.stamps >= 4 else 8):
            P(f"v_mov_b32 v{T+2}, s{S_STAMP+2*i}"); P(f"v_mov_b32 v{T+3}, s{S_STAMP+2*i+1}")
            P(f"global_store_dwordx2 v{T}, v[{T+2}:{T+3}], s[58:59] offset:{8*i}")
            P("s_nop 1")
    P("L_end:")
    P("s_endpgm")
    ftr = f"""
.section .rodata,"a"
.p2align 6
.amdhsa_kernel {NAME}
  .amdhsa_next_free_vgpr 512
  .amdhsa_next_free_sgpr 102
  .amdhsa_accum_offset 256
  .amdhsa_group_segment_fixed_size 0
  .amdhsa_kernarg_size 48
  .amdhsa_user_sgpr_count 2
  .amdhsa_user_sgpr_kernarg_segment_ptr 1
  .amdhsa_system_sgpr_workgroup_id_x 1
.end_amdhsa_kernel
"""
    return hdr + P.text() + ftr

def parser():
    ap = argparse.ArgumentParser()
    ap.add_argument("-o", default="standalone__transposed_strided__vision.s")
    ap.add_argument("--G", type=int, default=4)
    ap.add_argument("--store-flags", default="sc0 sc1")
    ap.add_argument("--stamps", type=int, default=0)
    ap.add_argument("--warm", type=int, default=1)
    ap.add_argument("--exp", default="")
    ap.add_argument("--probe", default="")
    ap.add_argument("--codepf", type=int, default=1)
    ap.add_argument("--xflags", default="nt")
    ap.add_argument("--wflags", default="")
    ap.add_argument("--even", type=int, default=1)
    ap.add_argument("--chain", type=int, default=0)
    ap.add_argument("--esplit", type=int, default=0)
    ap.add_argument("--share", type=int, default=0)
    ap.add_argument("--second", type=int, default=-1)
    ap.add_argument("--aorder", type=int, default=0)
    ap.add_argument("--tailgap", type=int, default=4)
    ap.add_argument("--barsteps", default="0,1,2,3,4,5,6,8")
    ap.add_argument("--rsched", default="0:0,1:1,2:2+3,3:4+5,4:6,5:7,6:8,7:9,8:10,9:11")
    ap.add_argument("--dsched", default="1:2+3+4,2:5+6,3:7+8,4:9,5:10,6:11")
    ap.add_argument("--xsched", default="4:5+6+7,5:8+9+10,6:11+12")
    ap.add_argument("--slots", default="r0,r1,b0,b1,b2,b3,r2,r3,r0,r1,r2,r3")
    return ap

if __name__ == "__main__":
    args = parser().parse_args()
    open(args.o, "w").write(gen(args))
```

```python
import sys, argparse

NAME = "standalone__transposed_strided__vision_kernel"

XROW = 4096
NXROWS = 26
WB = NXROWS * XROW
WSLOT = 6160
NRING = 4
WPH = WSLOT * NRING
LDS_BYTES = WB + 2 * WPH

def wreg(s, t):
    f = s * 6 + t
    if f < 64:
        return "a", 4 * f
    return "v", 224 + 4 * (f - 64)
def rng(kind, base, n):
    return f"{kind}[{base}:{base+n-1}]"
ACC = [0, 24, 48, 72, 96]
BIAS = 120
BFR = 144
OUTP = 192
V_LDS, V_OUT, V_TR, V_TR2 = 204, 205, 206, 207
V_W0, V_W1, V_W2 = 208, 209, 210
V_X0 = 211
V_L12 = 214
S_OUT12 = 57
V_BOFF = 212
V_LANE = 213
V_T = 96
V_D = 216

S_X, S_W, S_O, S_B = 8, 12, 16, 20
S_WAVE, S_PX, S_HALF, S_PY, S_STRIP, S_R0, S_NG, S_OUT, S_WG, S_T, S_WL, S_XR = 28, 29, 30, 31, 32, 33, 34, 35, 36, 37, 38, 39
S_T2, S_CNT, S_XSZ, S_XL, S_XG, S_WM, S_WM2, S_WL2 = 40, 41, 42, 43, 44, 48, 49, 56
S_STAMP = 60

class Prog:
    def __init__(self):
        self.L = []
    def __call__(self, s):
        if s is not None:
            self.L.append(s)
    def text(self):
        return "\n".join(("" if l.endswith(":") else "    ") + l for l in self.L) + "\n"

class VM:
    def __init__(self, ops=None):
        self.ops = list(ops) if ops else []
    def add(self, tag):
        self.ops.append(tag)
    def wait(self, tags):
        idx = [i for i, t in enumerate(self.ops) if t in tags]
        if not idx: return None
        n = len(self.ops) - 1 - max(idx)
        assert n <= 63, n
        return f"s_waitcnt vmcnt({n})"

C_S, C_V, C_DS, C_DMA, C_ST = 4, 4, 8, 8, 8
def S(x): return (x, None, C_S)
def V(x): return (x, None, C_V)
def D(x): return (x, None, C_DS)
EXP = ""; XFL = "nt"; WFL = ""; GG = 5

SLOTS = None
def slot_of(c):
    return SLOTS[c]

def mfma(acc, t, s, bf, first):
    k, b = wreg(s, t)
    d = rng("v", acc + 4 * t, 4)
    c = rng("v", BIAS + 4 * t, 4) if first else d
    return f"v_mfma_f32_16x16x32_bf16 {d}, {rng(k, b, 4)}, {rng('v', bf, 4)}, {c}"

def bread(bf, row, b, ks):
    off = row * XROW + (1 - b) * 224 + ks * 64
    assert off < 65536
    return D(f"ds_read_b128 {rng('v', bf, 4)}, v{V_LDS} offset:{off}")

def rowreads(buf, row):
    return [bread(buf + 4 * (b * 3 + ks), row, b, ks) for b in range(2) for ks in range(3)]

def trreads(c):
    L = []
    kind, slot = slot_of(c)
    va = V_TR if kind == "ring" else V_TR2
    for t in range(6):
        j, tb = t >> 1, t & 1
        k, b = wreg(c, t)
        for h in range(2):
            off = slot * WSLOT + h * 768 + j * 64 + tb * 8
            L.append(D(f"ds_read_b64_tr_b16 {rng(k, b + 2 * h, 2)}, v{va} offset:{off}"))
    return L

def wdma(c):
    kind, slot = slot_of(c)
    sm = S_WM if kind == "ring" else S_WM2
    tap, ks = divmod(c, 3)
    a, b = tap >> 1, tap & 1
    goff = (2 * a * 4 + 2 * b) * 18432 + ks * 6144
    tag = f"w{c}"
    def ld(v, off):
        o = f" offset:{off}" if off else ""
        return (f"buffer_load_dwordx4 v{v}, s[{S_W}:{S_W+3}], s{S_T} offen{o} {WFL} lds".replace("  ", " "), tag, C_DMA)
    return [
        S(f"s_add_u32 m0, s{sm}, {slot * WSLOT}"),
        S(f"s_add_u32 s{S_T}, s{S_WG}, {goff}"),
        ld(V_W0, 0), ld(V_W1, 1024), ld(V_W2, 2048),
    ]

def xdma(rho):
    tag = f"x{rho}"
    L = []
    chk = rho in (0, 24, 25)
    if chk:
        L.append(S(f"s_add_u32 s{S_T2}, s{S_XR}, {rho}"))
        L.append(S(f"s_cmp_lt_u32 s{S_T2}, 224"))
        L.append(S(f"s_cselect_b32 s{S_X+2}, s{S_XSZ}, 0"))
    L.append(S(f"s_add_u32 m0, s{S_XL}, {rho * XROW}"))
    L.append(S(f"s_add_u32 s{S_T2}, s{S_XG}, {rho * 43008}"))
    L.append((f"buffer_load_dwordx4 v{V_X0}, s[{S_X}:{S_X+3}], s{S_T2} offen {XFL} lds".replace("  ", " "), tag, C_DMA))
    if chk:
        L.append(S(f"s_mov_b32 s{S_X+2}, s{S_XSZ}"))
    return L

def cvts(acc, j):
    o = OUTP + 4 * j
    t0, t1 = acc + 8 * j, acc + 8 * j + 4
    return [V(f"v_cvt_pk_bf16_f32 v{o}, v{t0}, v{t0+1}"), V(f"v_cvt_pk_bf16_f32 v{o+1}, v{t0+2}, v{t0+3}"),
            V(f"v_cvt_pk_bf16_f32 v{o+2}, v{t1}, v{t1+1}"), V(f"v_cvt_pk_bf16_f32 v{o+3}, v{t1+2}, v{t1+3}")]
def store(j, sf):
    o = OUTP + 4 * j
    return (f"buffer_store_dwordx4 {rng('v', o, 4)}, v{V_OUT}, s[{S_O}:{S_O+3}], s{S_OUT} offen offset:{64*j} {sf}".rstrip(), "st", C_ST)
def outadv():
    return S(f"s_add_u32 s{S_OUT}, s{S_OUT}, {2*448*192}")
def epilogue(acc, sf):
    L = []
    for j in range(3):
        L += cvts(acc, j) + [store(j, sf)]
    L.append(outadv())
    if "nost" in EXP: L = [x for x in L if x[1] != "st"]
    return L

def emit(P, vm, item):
    txt, tag = item[0], item[1]
    P(txt)
    if tag is not None and vm is not None:
        vm.add(tag)

def pack(fillers, budget=8):
    out = []; cur = []; c = 0
    for it in fillers:
        if cur and c + it[2] > budget:
            out.append(cur); cur = []; c = 0
        cur.append(it); c += it[2]
    if cur: out.append(cur)
    return out

def spread_bundles(P, vm, mfmas, bundles, start=0, end=None):
    n = len(mfmas)
    if end is None: end = n
    gaps = end - start
    at = {}
    for i, b in enumerate(bundles):
        g = start + (i * gaps) // len(bundles)
        at.setdefault(g, []).extend(b)
    for i, m in enumerate(mfmas):
        P(m)
        for it in at.get(i, []):
            emit(P, vm, it)

def interleave(P, vm, mfmas, fillers, start=0, end=None):
    bundles = pack(fillers)
    if not bundles:
        for m in mfmas: P(m)
        return
    spread_bundles(P, vm, mfmas, bundles, start, end)

def mix(a, b):
    out = []; i = j = 0
    while i < len(a) or j < len(b):
        if j >= len(b) or (i < len(a) and i * len(b) <= j * len(a)):
            out.append(a[i]); i += 1
        else:
            out.append(b[j]); j += 1
    return out

def dma_bundles(items):
    out = []; cur = []
    for it in items:
        cur.append(it)
        if it[1] is not None:
            out.append(cur); cur = []
    if cur:
        out[-1] = out[-1] + cur
    return out

COARSE = {0: 0, 1: 1, 2: 2, 3: 3, 14: 7, 15: 4, 17: 5, 18: 6}
def stamp(P, args, idx):
    if args.stamps in (1, 3):
        if idx in COARSE: i = COARSE[idx]; P(f"s_memrealtime s[{S_STAMP+2*i}:{S_STAMP+2*i+1}]")
    elif args.stamps == 4:
        P(f"s_memtime s[{S_STAMP+2*idx}:{S_STAMP+2*idx+1}]")
    elif args.stamps == 5:
        P(f"s_memrealtime s[{S_STAMP+2*idx}:{S_STAMP+2*idx+1}]")

def gen(args):
    G = args.G
    sf = args.store_flags
    if args.probe: args.stamps = 5
    global EXP, XFL, WFL, GG
    EXP = args.exp; XFL = args.xflags; WFL = args.wflags; GG = G
    global SLOTS
    SLOTS = [("ring" if t[0] == "r" else "bor", int(t[1:])) for t in args.slots.split(",")]
    assert all(k < ((12 - G) * XROW) // WSLOT for kind, k in SLOTS if kind == "bor")
    P = Prog()
    hdr = f"""; Transposed conv 4x4 stride 2, x(1,224,224,96) bf16 -> out(1,448,448,96) bf16, gfx950.
; One workgroup = (16-pixel-wide strip x 24/25 input rows, output row parity py); wave = (px, half).
; Each wave keeps the 4 taps of its phase (384 x 96 bf16) in 288 registers and streams pixel rows from LDS.
; @launch grid=(256,1,1) block=(256,1,1) lds={LDS_BYTES}
.amdgcn_target "amdgcn-amd-amdhsa--gfx950"
.text
.globl {NAME}
.p2align 8
.type {NAME},@function
{NAME}:
"""
    stamp(P, args, 0)
    P("s_load_dwordx4 s[4:7], s[0:1], 0")
    P("s_load_dwordx4 s[24:27], s[0:1], 16")
    if args.stamps and not args.probe:
        P(f"s_load_dwordx2 s[58:59], s[0:1], {32 if args.stamps == 3 else 40}")
    P("s_and_b32 s3, s2, 7")
    P("s_lshr_b32 s45, s2, 3")
    P(f"s_and_b32 s{S_PY}, s45, 1")
    P("s_lshr_b32 s46, s45, 1")
    P("s_lshl_b32 s3, s3, 4")
    P("s_add_u32 s3, s3, s46")
    P("s_cmp_ge_u32 s2, 256")
    P("s_cbranch_scc1 L_end")
    P("s_cmp_ge_u32 s3, 126")
    P("s_cbranch_scc1 L_end")
    l = V_LANE
    P(f"v_lshrrev_b32 v{V_T}, 6, v0")
    P(f"v_and_b32 v{l}, 63, v0")
    P(f"s_mul_i32 s{S_STRIP}, s3, 7282")
    P(f"v_readfirstlane_b32 s{S_WAVE}, v{V_T}")
    P(f"s_lshr_b32 s{S_STRIP}, s{S_STRIP}, 16")
    P(f"s_mul_i32 s46, s{S_STRIP}, 9")
    P("s_sub_u32 s46, s3, s46")
    P(f"s_mul_i32 s{S_R0}, s46, 25")
    P(f"s_and_b32 s{S_PX}, s{S_WAVE}, 1")
    P(f"s_lshr_b32 s{S_HALF}, s{S_WAVE}, 1")
    P("s_cmp_lt_u32 s46, 8")
    P(f"s_cselect_b32 s{S_NG}, 12, 11")
    P(f"s_cmp_eq_u32 s{S_HALF}, 0")
    P(f"s_cselect_b32 s{S_NG}, {12 if args.share else 13}, s{S_NG}")
    P(f"s_lshl_b32 s52, s45, 2")
    P(f"s_add_u32 s52, s52, s{S_WAVE}")
    if args.codepf:
        P("s_getpc_b64 s[50:51]")
        P("L_pc:")
        P(f"s_lshl_b32 s53, s52, 7")
        P(f"v_mov_b32 v{V_D+2}, s53")
        P(f"s_cmp_lt_u32 s53, L_end-L_pc")
        P(f"s_cbranch_scc0 L_nopf")
        P(f"global_load_dword v{V_D+3}, v{V_D+2}, s[50:51]")
        P(f"L_nopf:")
    P("s_mul_i32 s47, s52, 2304")
    P(f"v_lshlrev_b32 v{V_T+3}, 7, v{l}")
    P(f"v_add_u32 v{V_T+3}, s47, v{V_T+3}")
    P(f"v_cmp_gt_u32 vcc, 18, v{l}")
    P(f"v_mov_b32 v{V_T+5}, 0x80000000")
    P(f"v_lshrrev_b32 v{V_T}, 4, v{l}")
    P(f"v_cndmask_b32 v{V_T+3}, v{V_T+5}, v{V_T+3}, vcc")
    P(f"v_lshlrev_b32 v{V_BOFF}, 4, v{V_T}")
    P(f"s_mul_i32 s46, s{S_HALF}, 1536")
    P(f"v_lshlrev_b32 v{V_W0}, 4, v{l}")
    P(f"v_lshrrev_b32 v{V_T+2}, 5, v{l}")
    P(f"v_add_u32 v{V_W0}, s46, v{V_W0}")
    P(f"v_mul_u32_u24 v{V_T+2}, 1536, v{V_T+2}")
    P(f"v_add_u32 v{V_W2}, 1536, v{V_W0}")
    P(f"v_add_u32 v{V_W1}, v{V_W0}, v{V_T+2}")
    P(f"s_sub_u32 s46, 1, s{S_PY}")
    P("s_lshl_b32 s46, s46, 2")
    P(f"s_sub_u32 s47, 1, s{S_PX}")
    P("s_add_u32 s46, s46, s47")
    P(f"s_mul_i32 s{S_WG}, s46, 18432")
    P(f"s_mul_i32 s{S_WL}, s{S_PX}, {WPH}")
    P(f"s_add_u32 s{S_WL}, s{S_WL}, {WB}")
    P(f"s_mul_i32 s46, s{S_HALF}, 3080")
    P(f"s_add_u32 s{S_WM}, s{S_WL}, s46")
    P(f"s_mul_i32 s{S_WL2}, s{S_PX}, {13 * XROW}")
    P(f"s_add_u32 s{S_WL2}, s{S_WL2}, {(G + 1) * XROW}")
    P(f"s_add_u32 s{S_WM2}, s{S_WL2}, s46")
    P(f"s_lshl_b32 s46, s{S_WAVE}, 6")
    P(f"s_lshl_b32 s{S_XL}, s{S_WAVE}, 10")
    P(f"s_lshl_b32 s47, s{S_STRIP}, 4")
    P("s_sub_u32 s47, s47, 1")
    t = V_T + 6
    P(f"v_add_u32 v{t}, s46, v{l}")
    P(f"v_mul_u32_u24 v{t+1}, 4682, v{t}")
    P(f"v_lshrrev_b32 v{t+1}, 16, v{t+1}")
    P(f"v_mul_u32_u24 v{t+2}, 14, v{t+1}")
    P(f"v_sub_u32 v{t+2}, v{t}, v{t+2}")
    P(f"v_add_u32 v{t+3}, s47, v{t+1}")
    P(f"v_cmp_gt_u32 vcc, 12, v{t+2}")
    P(f"v_mul_i32_i24 v{t+4}, 192, v{t+3}")
    P(f"v_lshl_add_u32 v{t+4}, v{t+2}, 4, v{t+4}")
    P(f"v_cndmask_b32 v{t+4}, v{V_T+5}, v{t+4}, vcc")
    P(f"v_cmp_gt_u32 vcc, 18, v{t+1}")
    P(f"s_add_u32 s{S_XR}, s{S_R0}, s{S_PY}")
    P(f"s_sub_u32 s{S_XR}, s{S_XR}, 1")
    P(f"v_cndmask_b32 v{t+4}, v{V_T+5}, v{t+4}, vcc")
    P(f"v_cmp_gt_u32 vcc, 224, v{t+3}")
    P(f"s_mul_i32 s{S_XG}, s{S_XR}, 43008")
    P(f"s_mov_b32 s{S_XSZ}, 9633792")
    P(f"v_cndmask_b32 v{V_X0}, v{V_T+5}, v{t+4}, vcc")
    P("s_waitcnt lgkmcnt(0)")
    stamp(P, args, 1)
    vm = VM(["code"] if args.codepf else [])
    def srd(r, lo, sz):
        P(f"s_mov_b32 s{r}, s{lo}")
        P(f"s_mov_b32 s{r+1}, s{lo+1}")
        P(f"s_mov_b32 s{r+2}, {sz}")
        P(f"s_mov_b32 s{r+3}, 0x20000")
    def warm():
        if args.warm:
            P(f"buffer_load_dword v{V_D}, v{V_T+3}, s[{S_W}:{S_W+3}], 0 offen")
            vm.add("warm")
    def biasloads():
        for j in range(3):
            P(f"buffer_load_dwordx4 {rng('v', OUTP+4*j, 4)}, v{V_BOFF}, s[{S_B}:{S_B+3}], 0 offen offset:{64*j}")
            vm.add("bias")
    srd(S_W, 6, 294912)
    if args.warm == 1: warm()
    for it in wdma(0): emit(P, vm, it)
    srd(S_B, 24, 192)
    biasloads()
    srd(S_X, 4, 9633792)

    def late_setup():
        q, p = V_T, V_T + 1
        L = []
        A = L.append
        A(f"v_and_b32 v{p}, 15, v{l}")
        A(f"v_add_u32 v{V_T+2}, s{S_PX}, v{p}")
        A(f"v_mul_u32_u24 v{V_T+2}, 224, v{V_T+2}")
        A(f"v_lshl_add_u32 v{V_T+2}, v{q}, 4, v{V_T+2}")
        A(f"s_mul_i32 s46, s{S_HALF}, {13*XROW}")
        A(f"v_add_u32 v{V_LDS}, s46, v{V_T+2}")
        A(f"v_mul_u32_u24 v{V_T+2}, 384, v{p}")
        A(f"v_lshl_add_u32 v{V_T+2}, v{q}, 4, v{V_T+2}")
        A(f"s_mul_i32 s46, s{S_PX}, 192")
        A(f"v_add_u32 v{V_OUT}, s46, v{V_T+2}")
        A(f"s_mul_i32 s46, s{S_HALF}, 13")
        A(f"s_add_u32 s46, s46, s{S_R0}")
        A("s_lshl_b32 s46, s46, 1")
        A(f"s_add_u32 s46, s46, s{S_PY}")
        A("s_mul_i32 s46, s46, 448")
        A(f"s_lshl_b32 s47, s{S_STRIP}, 5")
        A("s_add_u32 s46, s46, s47")
        A(f"s_mul_i32 s{S_OUT}, s46, 192")
        if args.share:
            A(f"s_mul_i32 s46, s{S_HALF}, {13*XROW}")
            A(f"s_sub_u32 s46, {12*XROW}, s46")
            A(f"v_add_u32 v{V_L12}, s46, v{V_LDS}")
            A(f"s_mul_i32 s46, s{S_HALF}, {13*2*448*192}")
            A(f"s_sub_u32 s46, {12*2*448*192}, s46")
            A(f"s_add_u32 s{S_OUT12}, s{S_OUT}, s46")
        A(f"v_and_b32 v{V_T+2}, 1, v{q}")
        A(f"v_mul_u32_u24 v{V_T+2}, 3080, v{V_T+2}")
        A(f"v_lshrrev_b32 v{V_T+4}, 1, v{q}")
        A(f"v_mul_u32_u24 v{V_T+4}, 1536, v{V_T+4}")
        A(f"v_add_u32 v{V_T+2}, v{V_T+2}, v{V_T+4}")
        A(f"v_bfe_u32 v{V_T+4}, v{l}, 2, 2")
        A(f"v_mul_u32_u24 v{V_T+4}, 192, v{V_T+4}")
        A(f"v_add_u32 v{V_T+2}, v{V_T+2}, v{V_T+4}")
        A(f"v_and_b32 v{V_T+4}, 3, v{l}")
        A(f"v_lshl_add_u32 v{V_T+2}, v{V_T+4}, 4, v{V_T+2}")
        A(f"v_add_u32 v{V_TR}, s{S_WL}, v{V_T+2}")
        A(f"v_add_u32 v{V_TR2}, s{S_WL2}, v{V_T+2}")
        return L

    PB, QB = BFR, BFR + 24
    def bfr(s, g):
        return BFR + 4 * (((s + 1) & 1) * G + g)
    assert 4 * G <= 24
    X = lambda rows: [f"x{r}" for r in rows]
    def pair(r): return [q for q in (r, 13 + r) if q <= 25]
    first = []
    for g in range(G): first += [1 + g, 14 + g]
    second = [0, 13]
    rsched = {int(k): [int(c) for c in v.split("+")] for k, v in (kv.split(":") for kv in args.rsched.split(","))}
    dsched = {int(k): [int(c) for c in v.split("+")] for k, v in (kv.split(":") for kv in args.dsched.split(","))}
    xsched = {int(k): [int(c) for c in v.split("+")] for k, v in (kv.split(":") for kv in args.xsched.split(","))}
    rstep = {c: s for s, v in rsched.items() for c in v}
    dstep = {c: s for s, v in dsched.items() for c in v}
    pre_w = [c for c in range(12) if c not in dstep]
    assert sorted(rstep) == list(range(12)) and pre_w[0] == 0
    for c in range(12):
        assert rstep[c] <= c
        if c in dstep: assert dstep[c] < rstep[c]
    for c2 in range(12):
        for c1 in range(c2):
            if slot_of(c1) == slot_of(c2): assert dstep[c2] >= rstep[c1] + 1, (c1, c2)
    xrows_rest = sorted(r for v in xsched.values() for r in v)
    assert xrows_rest == list(range(G + 1, 13)), xrows_rest
    nb = ((12 - G) * XROW) // WSLOT
    for s, v in xsched.items():
        for r in v:
            lo, hi = (r - G - 1) * XROW, (r - G) * XROW
            for b in range(nb):
                if lo < (b + 1) * WSLOT and hi > b * WSLOT:
                    for c in range(12):
                        if slot_of(c) == ("bor", b): assert s >= rstep[c] + 1, (r, s, b)
    bar_steps = sorted(set(rsched.keys()))
    if args.barsteps:
        bar_steps = [int(x) for x in args.barsteps.split(",")]
    def bar_between(lo, hi): return any(lo < b <= hi for b in bar_steps)
    for c2 in dstep:
        for c1 in range(c2):
            if slot_of(c1) == slot_of(c2): assert bar_between(rstep[c1], dstep[c2]), (c1, c2)
    for s_, v in xsched.items():
        for r in v:
            lo, hi = (r - G - 1) * XROW, (r - G) * XROW
            for b in range(nb):
                if lo < (b + 1) * WSLOT and hi > b * WSLOT:
                    for c in range(12):
                        if slot_of(c) == ("bor", b): assert bar_between(rstep[c], s_), (r, s_, c)

    for r in first:
        for it in xdma(r): emit(P, vm, it)
    if args.warm == 2: warm()
    for c in pre_w[1:2]:
        for it in wdma(c): emit(P, vm, it)
    if args.second < 0:
        for r in second:
            for it in xdma(r): emit(P, vm, it)
    for c in pre_w[2:]:
        for it in wdma(c): emit(P, vm, it)
    srd(S_O, 26, 38535168)
    for i in late_setup(): P(i)
    P(vm.wait(["bias"]))
    for j in range(3):
        for i in range(4):
            P(f"v_lshlrev_b32 v{BIAS+8*j+2*i}, 16, v{OUTP+4*j+i}")
            P(f"v_and_b32 v{BIAS+8*j+2*i+1}, 0xffff0000, v{OUTP+4*j+i}")
    stamp(P, args, 2)

    NM = 6 * G
    covered = set()
    for s in range(13):
        mf = []
        if s >= 1:
            P("s_waitcnt lgkmcnt(0)")
            if args.aorder and s <= 11:
                for t in range(6):
                    for g in range(G):
                        mf.append(mfma(ACC[g], t, s - 1, bfr(s - 1, g), s - 1 == 0))
            else:
                for g in range(G):
                    for t in range(6):
                        mf.append(mfma(ACC[g], t, s - 1, bfr(s - 1, g), s - 1 == 0))
        if s <= 11:
            rc = rsched.get(s, [])
            need = []
            if s in bar_steps:
                nxt = [b for b in bar_steps if b > s]
                upto = (nxt[0] if nxt else 13)
                pub = [c for c in range(12) if s <= rstep[c] < upto]
                need = [f"w{c}" for c in pub]
                covered |= set(pub)
                if s == 0: need += X(first)
                if s <= 6 and (not nxt or nxt[0] > 6): need += X(second)
            for c in rc: assert c in covered, (s, c)
            if s in bar_steps:
                if mf:
                    P(mf[0]); P(vm.wait(need)); P(mf[1]); P("s_barrier"); mf = mf[2:]
                else:
                    P(vm.wait(need)); P("s_barrier")
            if s == 0: stamp(P, args, 3)
            tap, ks = divmod(s, 3)
            a, b = tap >> 1, tap & 1
            breads = [bread(bfr(s, g), g + 1 - a, b, ks) for g in range(G)]
            trs = [x for c in rc for x in trreads(c)]
            dm = [x for c in dsched.get(s, []) for x in wdma(c)]
            xd = [x for r in ([0] if args.second == s else []) + xsched.get(s, []) for q in pair(r) for x in xdma(q)]
            if s == 0:
                for it in breads[:1] + trs + breads[1:] + dm + xd: emit(P, vm, it)
            else:
                rb = [[x] for x in breads + trs]
                db = dma_bundles(dm + xd) if (dm or xd) else []
                bl = mix(rb, db) if db else rb
                end = len(mf) - (args.tailgap if len(bl) <= len(mf) - args.tailgap else 0)
                if not db: end = max(len(rb), min(end, len(rb) + len(rb) // 2)) if rb else len(mf)
                spread_bundles(P, vm, mf, bl, 0, min(end, len(mf))) if bl else [P(m) for m in mf]
                stamp(P, args, 3 + s)
        else:
            pre = rowreads(QB, G)
            interleave(P, vm, mf[:9], pre)
            cv = cvts(ACC[0], 0) + cvts(ACC[0], 1) + cvts(ACC[0], 2)
            interleave(P, vm, mf[9:], cv)
    P(vm.wait(X(range(NXROWS))))
    P("s_barrier")
    P("L_main:")
    stamp(P, args, 15)

    def group(vm, accp, old, new, row, extra_first, e1, e2, tail=[]):
        if args.chain:
            mf = [mfma(accp, t, s, old + 4 * (s - 6), s == 6) for t in range(6) for s in range(6, 12)]
        else:
            mf = [mfma(accp, t, s, old + 4 * (s - 6), s == 6) for s in range(6, 12) for t in range(6)]
        interleave(P, vm, mf[:6], list(extra_first))
        interleave(P, vm, mf[6:], e1)
        if args.chain:
            mf = [mfma(accp, t, s, new + 4 * s, False) for t in range(6) for s in range(0, 6)]
        else:
            mf = [mfma(accp, t, s, new + 4 * s, False) for s in range(0, 6) for t in range(6)]
        P("s_waitcnt lgkmcnt(0)")
        reads = rowreads(old, row + 2)
        interleave(P, vm, mf, mix(reads, e2) + list(tail))

    P("s_waitcnt lgkmcnt(0)")
    E = lambda a: epilogue(a, sf)
    st0 = [store(0, sf), store(1, sf), store(2, sf), outadv()]
    if "nost" in EXP: st0 = [outadv()]
    free = [0]
    pend = list(range(1, G))
    g = G
    old, new = QB, PB
    firstp = True
    npeel = G - 1 if args.even else (G - 1) // 2 + 1
    while True:
        cur = free.pop(0)
        if firstp:
            e1 = st0; e2 = E(ACC[pend[0]]); done = [pend.pop(0)]
            if not args.even and pend:
                e1 = st0 + E(ACC[done[0]]); e2 = E(ACC[pend[0]]); done.append(pend.pop(0))
            extra = rowreads(PB, G + 1)
        else:
            done = [pend.pop(0)]
            e1 = E(ACC[done[0]]); e2 = []
            if pend:
                done.append(pend.pop(0)); e2 = E(ACC[done[1]])
            extra = []
        last = (len(pend) == 0)
        tail = []
        if last:
            tail = [S(f"s_sub_u32 s{S_CNT}, s{S_NG}, {g+1}"), V(f"v_add_u32 v{V_LDS}, {(g+1)*XROW}, v{V_LDS}")]
        group(vm, ACC[cur], old, new, g, extra, e1, e2, tail)
        if firstp: stamp(P, args, 16)
        firstp = False
        free += done
        pend.append(cur)
        old, new = new, old
        g += 1
        if last: break
    assert len(pend) == 1
    A1 = ACC[pend[0]]; A0 = ACC[free[0]]
    assert g <= 10, g
    if args.share and args.h0tail: assert (12 - g) % 2 == 1
    P("L_loop:")
    dec = [S(f"s_sub_u32 s{S_CNT}, s{S_CNT}, 1"), S(f"s_cmp_eq_u32 s{S_CNT}, 0")]
    def split(e):
        k = args.esplit
        return (e[:k], e[k:]) if k else (e, [])
    ea, eb = split(E(A1))
    group(None, A0, old, new, 0, [], ea, eb, tail=dec)
    P("s_cbranch_scc1 L_fin1")
    ea, eb = split(E(A0))
    group(None, A1, new, old, 1, [], ea, eb, tail=[V(f"v_add_u32 v{V_LDS}, {2*XROW}, v{V_LDS}")] + dec)
    P("s_cbranch_scc0 L_loop")
    def mid_reads():
        L = []
        for buf, row in ((PB, 0), (QB, 1)):
            for b in range(2):
                for ks in range(3):
                    off = row * XROW + (1 - b) * 224 + ks * 64
                    L.append(f"ds_read_b128 {rng('v', buf + 4 * (b * 3 + ks), 4)}, v{V_L12} offset:{off}")
        return L
    if args.share:
        for x in mid_reads(): P(x)
    else:
        P("s_nop 7")
    for it in E(A1): emit(P, None, it)
    P("s_branch L_done")
    P("L_fin1:")
    if args.share and args.h0tail:
        P(f"s_cmp_eq_u32 s{S_HALF}, 0")
        P("s_cbranch_scc0 L_fin1b")
        AP = [a for a in ACC[:4] if a not in (A0, A1)][0]
        def pm(t, s_, bf, first):
            k, b = wreg(s_, t)
            d = rng("v", AP + 4 * t, 4)
            c = rng("v", BIAS + 4 * t, 4) if first else d
            return f"v_mfma_f32_16x16x32_bf16 {d}, {rng(k, b, 4)}, {rng('v', bf, 4)}, {c}"
        mf = [pm(t, s_, new + 4 * (s_ - 6), s_ == 6) for t in range(4) for s_ in range(6, 12)]
        interleave(P, None, mf[:3], [])
        interleave(P, None, mf[3:], E(A0))
        P("s_waitcnt lgkmcnt(0)")
        mf = [pm(t, s_, old + 4 * s_, False) for t in range(4) for s_ in range(0, 6)]
        def st12(j):
            o = OUTP + 4 * j
            return (f"buffer_store_dwordx4 {rng('v', o, 4)}, v{V_OUT}, s[{S_O}:{S_O+3}], s{S_OUT12} offen offset:{64*j} {sf}".rstrip(), "st", C_ST)
        interleave(P, None, mf[:18], [])
        interleave(P, None, mf[18:], cvts(AP, 0) + [st12(0)])
        P("s_nop 7")
        for it in cvts(AP, 1) + [st12(1)]: emit(P, None, it)
        P("s_branch L_done2")
        P("L_fin1b:")
    if args.share:
        for x in mid_reads(): P(x)
    else:
        P("s_nop 7")
    for it in E(A0): emit(P, None, it)
    P("L_done:")
    if args.share:
        AP = [a for a in ACC[:4] if a not in (A0, A1)][0]
        if args.h0tail:
            P("s_waitcnt lgkmcnt(0)")
        else:
            P(f"s_cmp_eq_u32 s{S_HALF}, 0")
            P("s_waitcnt lgkmcnt(0)")
            P("s_cbranch_scc0 L_mid1")
        for hf in ([1] if args.h0tail else range(2)):
            if hf and not args.h0tail: P("L_mid1:")
            tl = [0, 1, 2, 3] if hf == 0 else [4, 5]
            order = [(s_, i, t) for s_ in list(range(6, 12)) + list(range(0, 6)) for i, t in enumerate(tl)]
            if args.chain:
                order = [(s_, i, t) for i, t in enumerate(tl) for s_ in list(range(6, 12)) + list(range(0, 6))]
            for s_, i, t in order:
                bf = (PB + 4 * (s_ - 6)) if s_ >= 6 else (QB + 4 * s_)
                if True:
                    k, b = wreg(s_, t)
                    d = rng("v", AP + 4 * i, 4)
                    c = rng("v", BIAS + 4 * t, 4) if s_ == 6 else d
                    P(f"v_mfma_f32_16x16x32_bf16 {d}, {rng(k, b, 4)}, {rng('v', bf, 4)}, {c}")
            P("s_nop 7")
            o = OUTP
            cv = lambda dst, a: [P(f"v_cvt_pk_bf16_f32 v{dst}, v{a}, v{a+1}"), P(f"v_cvt_pk_bf16_f32 v{dst+1}, v{a+2}, v{a+3}")]
            for i in range(0, len(tl), 2):
                j = tl[i] >> 1
                oo = o + 4 * (i >> 1)
                cv(oo, AP + 4 * i); cv(oo + 2, AP + 4 * i + 4)
                P(f"buffer_store_dwordx4 {rng('v', oo, 4)}, v{V_OUT}, s[{S_O}:{S_O+3}], s{S_OUT12} offen offset:{64*j} {sf}".rstrip())
            if hf == 0: P("s_branch L_done2")
        P("L_done2:")
    T = V_D
    if args.probe:
        a, b, K, wg = [int(x) for x in args.probe.split(",")]
        stamp(P, args, 17)
        P("s_waitcnt vmcnt(0)")
        stamp(P, args, 18)
        P("s_waitcnt lgkmcnt(0)")
        P(f"s_cmp_eq_u32 s2, {wg}")
        P("s_cbranch_scc0 L_end")
        P(f"s_sub_u32 s46, s{S_STAMP+2*b}, s{S_STAMP+2*a}")
        P(f"s_mul_i32 s46, s46, {K}")
        P(f"s_min_u32 s46, s46, 20000")
        P(f"s_add_u32 s46, s46, s{S_STAMP+2*18}")
        P("L_spin:")
        P("s_memrealtime s[50:51]")
        P("s_waitcnt lgkmcnt(0)")
        P("s_sub_u32 s53, s46, s50")
        P("s_cmp_gt_i32 s53, 0")
        P("s_cbranch_scc1 L_spin")
    elif args.stamps:
        stamp(P, args, 17)
        P("s_waitcnt vmcnt(0)")
        stamp(P, args, 18)
        P("s_waitcnt lgkmcnt(0)")
        P(f"s_lshl_b32 s46, s2, 2"); P(f"s_add_u32 s46, s46, s{S_WAVE}"); P(f"s_lshl_b32 s46, s46, {8 if args.stamps >= 4 else 6}")
        P(f"v_mov_b32 v{T}, s46")
        P(f"v_cmp_eq_u32 vcc, 0, v{V_LANE}")
        P("s_and_saveexec_b64 s[54:55], vcc")
        for i in range(19 if args.stamps >= 4 else 8):
            P(f"v_mov_b32 v{T+2}, s{S_STAMP+2*i}"); P(f"v_mov_b32 v{T+3}, s{S_STAMP+2*i+1}")
            P(f"global_store_dwordx2 v{T}, v[{T+2}:{T+3}], s[58:59] offset:{8*i}")
            P("s_nop 1")
    P("L_end:")
    P("s_endpgm")
    ftr = f"""
.section .rodata,"a"
.p2align 6
.amdhsa_kernel {NAME}
  .amdhsa_next_free_vgpr 512
  .amdhsa_next_free_sgpr 102
  .amdhsa_accum_offset 256
  .amdhsa_group_segment_fixed_size 0
  .amdhsa_kernarg_size 48
  .amdhsa_user_sgpr_count 2
  .amdhsa_user_sgpr_kernarg_segment_ptr 1
  .amdhsa_system_sgpr_workgroup_id_x 1
.end_amdhsa_kernel
"""
    return hdr + P.text() + ftr

def parser():
    ap = argparse.ArgumentParser()
    ap.add_argument("-o", default="standalone__transposed_strided__vision.s")
    ap.add_argument("--G", type=int, default=4)
    ap.add_argument("--store-flags", default="sc0 sc1")
    ap.add_argument("--stamps", type=int, default=0)
    ap.add_argument("--warm", type=int, default=1)
    ap.add_argument("--exp", default="")
    ap.add_argument("--probe", default="")
    ap.add_argument("--codepf", type=int, default=1)
    ap.add_argument("--xflags", default="nt")
    ap.add_argument("--wflags", default="")
    ap.add_argument("--even", type=int, default=1)
    ap.add_argument("--h0tail", type=int, default=0)
    ap.add_argument("--chain", type=int, default=0)
    ap.add_argument("--esplit", type=int, default=0)
    ap.add_argument("--share", type=int, default=0)
    ap.add_argument("--second", type=int, default=-1)
    ap.add_argument("--aorder", type=int, default=0)
    ap.add_argument("--tailgap", type=int, default=4)
    ap.add_argument("--barsteps", default="0,1,2,3,4,5,6,8")
    ap.add_argument("--rsched", default="0:0,1:1,2:2+3,3:4+5,4:6,5:7,6:8,7:9,8:10,9:11")
    ap.add_argument("--dsched", default="1:2+3+4,2:5+6,3:7+8,4:9,5:10,6:11")
    ap.add_argument("--xsched", default="4:5+6+7,5:8+9+10,6:11+12")
    ap.add_argument("--slots", default="r0,r1,b0,b1,b2,b3,r2,r3,r0,r1,r2,r3")
    return ap

if __name__ == "__main__":
    args = parser().parse_args()
    open(args.o, "w").write(gen(args))
```

```python
import sys, argparse

NAME = "standalone__transposed_strided__vision_kernel"

XROW = 4096
NXROWS = 26
WB = NXROWS * XROW
WSLOT = 6160
NRING = 4
WPH = WSLOT * NRING
LDS_BYTES = WB + 2 * WPH

def wreg(s, t):
    f = s * 6 + t
    if f < 64:
        return "a", 4 * f
    return "v", 224 + 4 * (f - 64)
def rng(kind, base, n):
    return f"{kind}[{base}:{base+n-1}]"
ACC = [0, 24, 48, 72, 96]
BIAS = 120
BFR = 144
OUTP = 192
V_LDS, V_OUT, V_TR, V_TR2 = 204, 205, 206, 207
V_W0, V_W1, V_W2 = 208, 209, 210
V_X0 = 211
V_L12 = 214
S_OUT12 = 57
V_BOFF = 212
V_LANE = 213
V_T = 96
V_D = 216

S_X, S_W, S_O, S_B = 8, 12, 16, 20
S_WAVE, S_PX, S_HALF, S_PY, S_STRIP, S_R0, S_NG, S_OUT, S_WG, S_T, S_WL, S_XR = 28, 29, 30, 31, 32, 33, 34, 35, 36, 37, 38, 39
S_T2, S_CNT, S_XSZ, S_XL, S_XG, S_WM, S_WM2, S_WL2 = 40, 41, 42, 43, 44, 48, 49, 56
S_STAMP = 60

class Prog:
    def __init__(self):
        self.L = []
    def __call__(self, s):
        if s is not None:
            self.L.append(s)
    def text(self):
        return "\n".join(("" if l.endswith(":") else "    ") + l for l in self.L) + "\n"

class VM:
    def __init__(self, ops=None):
        self.ops = list(ops) if ops else []
    def add(self, tag):
        self.ops.append(tag)
    def wait(self, tags):
        idx = [i for i, t in enumerate(self.ops) if t in tags]
        if not idx: return None
        n = len(self.ops) - 1 - max(idx)
        assert n <= 63, n
        return f"s_waitcnt vmcnt({n})"

C_S, C_V, C_DS, C_DMA, C_ST = 4, 4, 8, 8, 8
def S(x): return (x, None, C_S)
def V(x): return (x, None, C_V)
def D(x): return (x, None, C_DS)
EXP = ""; XFL = "nt"; WFL = ""; GG = 5

SLOTS = None
def slot_of(c):
    return SLOTS[c]

def mfma(acc, t, s, bf, first):
    k, b = wreg(s, t)
    d = rng("v", acc + 4 * t, 4)
    c = rng("v", BIAS + 4 * t, 4) if first else d
    return f"v_mfma_f32_16x16x32_bf16 {d}, {rng(k, b, 4)}, {rng('v', bf, 4)}, {c}"

def bread(bf, row, b, ks):
    off = row * XROW + (1 - b) * 224 + ks * 64
    assert off < 65536
    return D(f"ds_read_b128 {rng('v', bf, 4)}, v{V_LDS} offset:{off}")

def rowreads(buf, row):
    return [bread(buf + 4 * (b * 3 + ks), row, b, ks) for b in range(2) for ks in range(3)]

def trreads(c):
    L = []
    kind, slot = slot_of(c)
    va = V_TR if kind == "ring" else V_TR2
    for t in range(6):
        j, tb = t >> 1, t & 1
        k, b = wreg(c, t)
        for h in range(2):
            off = slot * WSLOT + h * 768 + j * 64 + tb * 8
            L.append(D(f"ds_read_b64_tr_b16 {rng(k, b + 2 * h, 2)}, v{va} offset:{off}"))
    return L

def wdma(c):
    kind, slot = slot_of(c)
    sm = S_WM if kind == "ring" else S_WM2
    tap, ks = divmod(c, 3)
    a, b = tap >> 1, tap & 1
    goff = (2 * a * 4 + 2 * b) * 18432 + ks * 6144
    tag = f"w{c}"
    def ld(v, off):
        o = f" offset:{off}" if off else ""
        return (f"buffer_load_dwordx4 v{v}, s[{S_W}:{S_W+3}], s{S_T} offen{o} {WFL} lds".replace("  ", " "), tag, C_DMA)
    return [
        S(f"s_add_u32 m0, s{sm}, {slot * WSLOT}"),
        S(f"s_add_u32 s{S_T}, s{S_WG}, {goff}"),
        ld(V_W0, 0), ld(V_W1, 1024), ld(V_W2, 2048),
    ]

def xdma(rho):
    tag = f"x{rho}"
    L = []
    chk = rho in (0, 24, 25)
    if chk:
        L.append(S(f"s_add_u32 s{S_T2}, s{S_XR}, {rho}"))
        L.append(S(f"s_cmp_lt_u32 s{S_T2}, 224"))
        L.append(S(f"s_cselect_b32 s{S_X+2}, s{S_XSZ}, 0"))
    L.append(S(f"s_add_u32 m0, s{S_XL}, {rho * XROW}"))
    L.append(S(f"s_add_u32 s{S_T2}, s{S_XG}, {rho * 43008}"))
    L.append((f"buffer_load_dwordx4 v{V_X0}, s[{S_X}:{S_X+3}], s{S_T2} offen {XFL} lds".replace("  ", " "), tag, C_DMA))
    if chk:
        L.append(S(f"s_mov_b32 s{S_X+2}, s{S_XSZ}"))
    return L

def cvts(acc, j):
    o = OUTP + 4 * j
    t0, t1 = acc + 8 * j, acc + 8 * j + 4
    return [V(f"v_cvt_pk_bf16_f32 v{o}, v{t0}, v{t0+1}"), V(f"v_cvt_pk_bf16_f32 v{o+1}, v{t0+2}, v{t0+3}"),
            V(f"v_cvt_pk_bf16_f32 v{o+2}, v{t1}, v{t1+1}"), V(f"v_cvt_pk_bf16_f32 v{o+3}, v{t1+2}, v{t1+3}")]
def store(j, sf):
    o = OUTP + 4 * j
    return (f"buffer_store_dwordx4 {rng('v', o, 4)}, v{V_OUT}, s[{S_O}:{S_O+3}], s{S_OUT} offen offset:{64*j} {sf}".rstrip(), "st", C_ST)
def outadv():
    return S(f"s_add_u32 s{S_OUT}, s{S_OUT}, {2*448*192}")
def epilogue(acc, sf):
    L = []
    for j in range(3):
        L += cvts(acc, j) + [store(j, sf)]
    L.append(outadv())
    if "nost" in EXP: L = [x for x in L if x[1] != "st"]
    return L

def emit(P, vm, item):
    txt, tag = item[0], item[1]
    P(txt)
    if tag is not None and vm is not None:
        vm.add(tag)

def pack(fillers, budget=8):
    out = []; cur = []; c = 0
    for it in fillers:
        if cur and c + it[2] > budget:
            out.append(cur); cur = []; c = 0
        cur.append(it); c += it[2]
    if cur: out.append(cur)
    return out

def spread_bundles(P, vm, mfmas, bundles, start=0, end=None):
    n = len(mfmas)
    if end is None: end = n
    gaps = end - start
    at = {}
    for i, b in enumerate(bundles):
        g = start + (i * gaps) // len(bundles)
        at.setdefault(g, []).extend(b)
    for i, m in enumerate(mfmas):
        P(m)
        for it in at.get(i, []):
            emit(P, vm, it)

def interleave(P, vm, mfmas, fillers, start=0, end=None):
    bundles = pack(fillers)
    if not bundles:
        for m in mfmas: P(m)
        return
    spread_bundles(P, vm, mfmas, bundles, start, end)

def mix(a, b):
    out = []; i = j = 0
    while i < len(a) or j < len(b):
        if j >= len(b) or (i < len(a) and i * len(b) <= j * len(a)):
            out.append(a[i]); i += 1
        else:
            out.append(b[j]); j += 1
    return out

def dma_bundles(items):
    out = []; cur = []
    for it in items:
        cur.append(it)
        if it[1] is not None:
            out.append(cur); cur = []
    if cur:
        out[-1] = out[-1] + cur
    return out

COARSE = {0: 0, 1: 1, 2: 2, 3: 3, 14: 7, 15: 4, 17: 5, 18: 6}
def stamp(P, args, idx):
    if args.stamps in (1, 3):
        if idx in COARSE: i = COARSE[idx]; P(f"s_memrealtime s[{S_STAMP+2*i}:{S_STAMP+2*i+1}]")
    elif args.stamps == 4:
        P(f"s_memtime s[{S_STAMP+2*idx}:{S_STAMP+2*idx+1}]")
    elif args.stamps == 5:
        P(f"s_memrealtime s[{S_STAMP+2*idx}:{S_STAMP+2*idx+1}]")

def gen(args):
    G = args.G
    sf = args.store_flags
    if args.probe: args.stamps = 5
    global EXP, XFL, WFL, GG
    EXP = args.exp; XFL = args.xflags; WFL = args.wflags; GG = G
    global SLOTS
    SLOTS = [("ring" if t[0] == "r" else "bor", int(t[1:])) for t in args.slots.split(",")]
    assert all(k < ((12 - G) * XROW) // WSLOT for kind, k in SLOTS if kind == "bor")
    P = Prog()
    hdr = f"""; Transposed convolution 4x4, stride 2: x(1,224,224,96) bf16, w(4,4,96,96), b(96) -> out(1,448,448,96) bf16, gfx950.
; Workgroup = (16-pixel-wide strip x 24/25 input rows, output row parity py); wave = (px, upper/lower half of the rows).
; Each wave keeps the four taps of its phase (384 x 96 bf16) in 288 registers as MFMA A operands (16x16x32, rows =
; output channels) and streams 16-pixel rows from LDS as B operands, so a lane ends up with 8 consecutive channels.
;  - x rows: LDS-DMA into a 224-byte-per-pixel image (conflict-free 16-byte reads), borders zero-filled by the range check
;  - W: LDS-DMA into staging slots, transposing LDS reads into the registers; the not yet loaded x rows serve as staging
;  - while W streams in, the first {G} rows of every wave are accumulated tap by tap
;  - every global read is finished before the first output store; afterwards one row per 72 MFMAs, the conversion and
;    the stores of the previous row in their shadow; the middle row of a region is split by channels between the halves
; @launch grid=(256,1,1) block=(256,1,1) lds={LDS_BYTES}
.amdgcn_target "amdgcn-amd-amdhsa--gfx950"
.text
.globl {NAME}
.p2align 8
.type {NAME},@function
{NAME}:
"""
    stamp(P, args, 0)
    P("s_load_dwordx4 s[4:7], s[0:1], 0")
    P("s_load_dwordx4 s[24:27], s[0:1], 16")
    if args.stamps and not args.probe:
        P(f"s_load_dwordx2 s[58:59], s[0:1], {32 if args.stamps == 3 else 40}")
    if args.xrot:
        P(f"s_add_u32 s3, s2, {args.xrot}")
        P("s_and_b32 s3, s3, 7")
    else:
        P("s_and_b32 s3, s2, 7")
    P("s_lshr_b32 s45, s2, 3")
    P(f"s_and_b32 s{S_PY}, s45, 1")
    P("s_lshr_b32 s46, s45, 1")
    P("s_lshl_b32 s3, s3, 4")
    P("s_add_u32 s3, s3, s46")
    P("s_cmp_ge_u32 s2, 256")
    P("s_cbranch_scc1 L_end")
    P("s_cmp_ge_u32 s3, 126")
    P("s_cbranch_scc1 L_end")
    l = V_LANE
    P(f"v_lshrrev_b32 v{V_T}, 6, v0")
    P(f"v_and_b32 v{l}, 63, v0")
    if args.map2d:
        P(f"s_mul_i32 s{S_STRIP}, s3, 3641")
        P(f"v_readfirstlane_b32 s{S_WAVE}, v{V_T}")
        P(f"s_lshr_b32 s{S_STRIP}, s{S_STRIP}, 16")
        P(f"s_mul_i32 s46, s{S_STRIP}, 18")
        P("s_sub_u32 s46, s3, s46")
        P("s_and_b32 s47, s46, 1")
        P(f"s_lshl1_add_u32 s{S_STRIP}, s{S_STRIP}, s47")
        P("s_lshr_b32 s46, s46, 1")
    else:
        P(f"s_mul_i32 s{S_STRIP}, s3, 7282")
        P(f"v_readfirstlane_b32 s{S_WAVE}, v{V_T}")
        P(f"s_lshr_b32 s{S_STRIP}, s{S_STRIP}, 16")
        P(f"s_mul_i32 s46, s{S_STRIP}, 9")
        P("s_sub_u32 s46, s3, s46")
    P(f"s_mul_i32 s{S_R0}, s46, 25")
    P(f"s_and_b32 s{S_PX}, s{S_WAVE}, 1")
    P(f"s_lshr_b32 s{S_HALF}, s{S_WAVE}, 1")
    P("s_cmp_lt_u32 s46, 8")
    P(f"s_cselect_b32 s{S_NG}, 12, 11")
    P(f"s_cmp_eq_u32 s{S_HALF}, 0")
    P(f"s_cselect_b32 s{S_NG}, {12 if args.share else 13}, s{S_NG}")
    P(f"s_lshl_b32 s52, s45, 2")
    P(f"s_add_u32 s52, s52, s{S_WAVE}")
    if args.codepf:
        P("s_getpc_b64 s[50:51]")
        P("L_pc:")
        P(f"s_lshl_b32 s53, s52, 7")
        P(f"v_mov_b32 v{V_D+2}, s53")
        P(f"s_cmp_lt_u32 s53, L_end-L_pc")
        P(f"s_cbranch_scc0 L_nopf")
        P(f"global_load_dword v{V_D+3}, v{V_D+2}, s[50:51]")
        P(f"L_nopf:")
    P("s_mul_i32 s47, s52, 2304")
    P(f"v_lshlrev_b32 v{V_T+3}, 7, v{l}")
    P(f"v_add_u32 v{V_T+3}, s47, v{V_T+3}")
    P(f"v_cmp_gt_u32 vcc, 18, v{l}")
    P(f"v_mov_b32 v{V_T+5}, 0x80000000")
    P(f"v_lshrrev_b32 v{V_T}, 4, v{l}")
    P(f"v_cndmask_b32 v{V_T+3}, v{V_T+5}, v{V_T+3}, vcc")
    P(f"v_lshlrev_b32 v{V_BOFF}, 4, v{V_T}")
    P(f"s_mul_i32 s46, s{S_HALF}, 1536")
    P(f"v_lshlrev_b32 v{V_W0}, 4, v{l}")
    P(f"v_lshrrev_b32 v{V_T+2}, 5, v{l}")
    P(f"v_add_u32 v{V_W0}, s46, v{V_W0}")
    P(f"v_mul_u32_u24 v{V_T+2}, 1536, v{V_T+2}")
    P(f"v_add_u32 v{V_W2}, 1536, v{V_W0}")
    P(f"v_add_u32 v{V_W1}, v{V_W0}, v{V_T+2}")
    P(f"s_sub_u32 s46, 1, s{S_PY}")
    P("s_lshl_b32 s46, s46, 2")
    P(f"s_sub_u32 s47, 1, s{S_PX}")
    P("s_add_u32 s46, s46, s47")
    P(f"s_mul_i32 s{S_WG}, s46, 18432")
    P(f"s_mul_i32 s{S_WL}, s{S_PX}, {WPH}")
    P(f"s_add_u32 s{S_WL}, s{S_WL}, {WB}")
    P(f"s_mul_i32 s46, s{S_HALF}, 3080")
    P(f"s_add_u32 s{S_WM}, s{S_WL}, s46")
    P(f"s_mul_i32 s{S_WL2}, s{S_PX}, {13 * XROW}")
    P(f"s_add_u32 s{S_WL2}, s{S_WL2}, {(G + 1) * XROW}")
    P(f"s_add_u32 s{S_WM2}, s{S_WL2}, s46")
    P(f"s_lshl_b32 s46, s{S_WAVE}, 6")
    P(f"s_lshl_b32 s{S_XL}, s{S_WAVE}, 10")
    P(f"s_lshl_b32 s47, s{S_STRIP}, 4")
    P("s_sub_u32 s47, s47, 1")
    t = V_T + 6
    P(f"v_add_u32 v{t}, s46, v{l}")
    P(f"v_mul_u32_u24 v{t+1}, 4682, v{t}")
    P(f"v_lshrrev_b32 v{t+1}, 16, v{t+1}")
    P(f"v_mul_u32_u24 v{t+2}, 14, v{t+1}")
    P(f"v_sub_u32 v{t+2}, v{t}, v{t+2}")
    P(f"v_add_u32 v{t+3}, s47, v{t+1}")
    P(f"v_cmp_gt_u32 vcc, 12, v{t+2}")
    P(f"v_mul_i32_i24 v{t+4}, 192, v{t+3}")
    P(f"v_lshl_add_u32 v{t+4}, v{t+2}, 4, v{t+4}")
    P(f"v_cndmask_b32 v{t+4}, v{V_T+5}, v{t+4}, vcc")
    P(f"v_cmp_gt_u32 vcc, 18, v{t+1}")
    P(f"s_add_u32 s{S_XR}, s{S_R0}, s{S_PY}")
    P(f"s_sub_u32 s{S_XR}, s{S_XR}, 1")
    P(f"v_cndmask_b32 v{t+4}, v{V_T+5}, v{t+4}, vcc")
    P(f"v_cmp_gt_u32 vcc, 224, v{t+3}")
    P(f"s_mul_i32 s{S_XG}, s{S_XR}, 43008")
    P(f"s_mov_b32 s{S_XSZ}, 9633792")
    P(f"v_cndmask_b32 v{V_X0}, v{V_T+5}, v{t+4}, vcc")
    P("s_waitcnt lgkmcnt(0)")
    stamp(P, args, 1)
    vm = VM(["code"] if args.codepf else [])
    def srd(r, lo, sz):
        P(f"s_mov_b32 s{r}, s{lo}")
        P(f"s_mov_b32 s{r+1}, s{lo+1}")
        P(f"s_mov_b32 s{r+2}, {sz}")
        P(f"s_mov_b32 s{r+3}, 0x20000")
    def warm():
        if args.warm:
            P(f"buffer_load_dword v{V_D}, v{V_T+3}, s[{S_W}:{S_W+3}], 0 offen")
            vm.add("warm")
    def biasloads():
        for j in range(3):
            P(f"buffer_load_dwordx4 {rng('v', OUTP+4*j, 4)}, v{V_BOFF}, s[{S_B}:{S_B+3}], 0 offen offset:{64*j}")
            vm.add("bias")
    srd(S_W, 6, 294912)
    if args.warm == 1: warm()
    for it in wdma(0): emit(P, vm, it)
    srd(S_B, 24, 192)
    biasloads()
    srd(S_X, 4, 9633792)

    def late_setup():
        q, p = V_T, V_T + 1
        L = []
        A = L.append
        A(f"v_and_b32 v{p}, 15, v{l}")
        A(f"v_add_u32 v{V_T+2}, s{S_PX}, v{p}")
        A(f"v_mul_u32_u24 v{V_T+2}, 224, v{V_T+2}")
        A(f"v_lshl_add_u32 v{V_T+2}, v{q}, 4, v{V_T+2}")
        A(f"s_mul_i32 s46, s{S_HALF}, {13*XROW}")
        A(f"v_add_u32 v{V_LDS}, s46, v{V_T+2}")
        A(f"v_mul_u32_u24 v{V_T+2}, 384, v{p}")
        A(f"v_lshl_add_u32 v{V_T+2}, v{q}, 4, v{V_T+2}")
        A(f"s_mul_i32 s46, s{S_PX}, 192")
        A(f"v_add_u32 v{V_OUT}, s46, v{V_T+2}")
        A(f"s_mul_i32 s46, s{S_HALF}, 13")
        A(f"s_add_u32 s46, s46, s{S_R0}")
        A("s_lshl_b32 s46, s46, 1")
        A(f"s_add_u32 s46, s46, s{S_PY}")
        A("s_mul_i32 s46, s46, 448")
        A(f"s_lshl_b32 s47, s{S_STRIP}, 5")
        A("s_add_u32 s46, s46, s47")
        A(f"s_mul_i32 s{S_OUT}, s46, 192")
        if args.share:
            A(f"s_mul_i32 s46, s{S_HALF}, {13*XROW}")
            A(f"s_sub_u32 s46, {12*XROW}, s46")
            A(f"v_add_u32 v{V_L12}, s46, v{V_LDS}")
            A(f"s_mul_i32 s46, s{S_HALF}, {13*2*448*192}")
            A(f"s_sub_u32 s46, {12*2*448*192}, s46")
            A(f"s_add_u32 s{S_OUT12}, s{S_OUT}, s46")
        A(f"v_and_b32 v{V_T+2}, 1, v{q}")
        A(f"v_mul_u32_u24 v{V_T+2}, 3080, v{V_T+2}")
        A(f"v_lshrrev_b32 v{V_T+4}, 1, v{q}")
        A(f"v_mul_u32_u24 v{V_T+4}, 1536, v{V_T+4}")
        A(f"v_add_u32 v{V_T+2}, v{V_T+2}, v{V_T+4}")
        A(f"v_bfe_u32 v{V_T+4}, v{l}, 2, 2")
        A(f"v_mul_u32_u24 v{V_T+4}, 192, v{V_T+4}")
        A(f"v_add_u32 v{V_T+2}, v{V_T+2}, v{V_T+4}")
        A(f"v_and_b32 v{V_T+4}, 3, v{l}")
        A(f"v_lshl_add_u32 v{V_T+2}, v{V_T+4}, 4, v{V_T+2}")
        A(f"v_add_u32 v{V_TR}, s{S_WL}, v{V_T+2}")
        A(f"v_add_u32 v{V_TR2}, s{S_WL2}, v{V_T+2}")
        return L

    PB, QB = BFR, BFR + 24
    def bfr(s, g):
        return BFR + 4 * (((s + 1) & 1) * G + g)
    assert 4 * G <= 24
    X = lambda rows: [f"x{r}" for r in rows]
    def pair(r): return [q for q in (r, 13 + r) if q <= 25]
    first = []
    for g in range(G): first += [1 + g, 14 + g]
    second = [0, 13]
    rsched = {int(k): [int(c) for c in v.split("+")] for k, v in (kv.split(":") for kv in args.rsched.split(","))}
    dsched = {int(k): [int(c) for c in v.split("+")] for k, v in (kv.split(":") for kv in args.dsched.split(","))}
    xsched = {int(k): [int(c) for c in v.split("+")] for k, v in (kv.split(":") for kv in args.xsched.split(","))}
    rstep = {c: s for s, v in rsched.items() for c in v}
    dstep = {c: s for s, v in dsched.items() for c in v}
    pre_w = [c for c in range(12) if c not in dstep]
    assert sorted(rstep) == list(range(12)) and pre_w[0] == 0
    for c in range(12):
        assert rstep[c] <= c
        if c in dstep: assert dstep[c] < rstep[c]
    for c2 in range(12):
        for c1 in range(c2):
            if slot_of(c1) == slot_of(c2): assert dstep[c2] >= rstep[c1] + 1, (c1, c2)
    xrows_rest = sorted(r for v in xsched.values() for r in v)
    assert xrows_rest == list(range(G + 1, 13)), xrows_rest
    nb = ((12 - G) * XROW) // WSLOT
    for s, v in xsched.items():
        for r in v:
            lo, hi = (r - G - 1) * XROW, (r - G) * XROW
            for b in range(nb):
                if lo < (b + 1) * WSLOT and hi > b * WSLOT:
                    for c in range(12):
                        if slot_of(c) == ("bor", b): assert s >= rstep[c] + 1, (r, s, b)
    bar_steps = sorted(set(rsched.keys()))
    if args.barsteps:
        bar_steps = [int(x) for x in args.barsteps.split(",")]
    def bar_between(lo, hi): return any(lo < b <= hi for b in bar_steps)
    for c2 in dstep:
        for c1 in range(c2):
            if slot_of(c1) == slot_of(c2): assert bar_between(rstep[c1], dstep[c2]), (c1, c2)
    for s_, v in xsched.items():
        for r in v:
            lo, hi = (r - G - 1) * XROW, (r - G) * XROW
            for b in range(nb):
                if lo < (b + 1) * WSLOT and hi > b * WSLOT:
                    for c in range(12):
                        if slot_of(c) == ("bor", b): assert bar_between(rstep[c], s_), (r, s_, c)

    for r in first:
        for it in xdma(r): emit(P, vm, it)
    if args.warm == 2: warm()
    for c in pre_w[1:2]:
        for it in wdma(c): emit(P, vm, it)
    if args.second < 0:
        for r in second:
            for it in xdma(r): emit(P, vm, it)
    for c in pre_w[2:]:
        for it in wdma(c): emit(P, vm, it)
    srd(S_O, 26, 38535168)
    for i in late_setup(): P(i)
    P(vm.wait(["bias"]))
    for j in range(3):
        for i in range(4):
            P(f"v_lshlrev_b32 v{BIAS+8*j+2*i}, 16, v{OUTP+4*j+i}")
            P(f"v_and_b32 v{BIAS+8*j+2*i+1}, 0xffff0000, v{OUTP+4*j+i}")
    stamp(P, args, 2)

    NM = 6 * G
    covered = set()
    for s in range(13):
        mf = []
        if s >= 1:
            P("s_waitcnt lgkmcnt(0)")
            if args.aorder and s <= 11:
                for t in range(6):
                    for g in range(G):
                        mf.append(mfma(ACC[g], t, s - 1, bfr(s - 1, g), s - 1 == 0))
            else:
                for g in range(G):
                    for t in range(6):
                        mf.append(mfma(ACC[g], t, s - 1, bfr(s - 1, g), s - 1 == 0))
        if s <= 11:
            rc = rsched.get(s, [])
            need = []
            if s in bar_steps:
                nxt = [b for b in bar_steps if b > s]
                upto = (nxt[0] if nxt else 13)
                pub = [c for c in range(12) if s <= rstep[c] < upto]
                need = [f"w{c}" for c in pub]
                covered |= set(pub)
                if s == 0: need += X(first)
                if s <= 6 and (not nxt or nxt[0] > 6): need += X(second)
            for c in rc: assert c in covered, (s, c)
            if s in bar_steps:
                if mf:
                    P(mf[0]); P(vm.wait(need)); P(mf[1]); P("s_barrier"); mf = mf[2:]
                else:
                    P(vm.wait(need)); P("s_barrier")
            if s == 0: stamp(P, args, 3)
            tap, ks = divmod(s, 3)
            a, b = tap >> 1, tap & 1
            breads = [bread(bfr(s, g), g + 1 - a, b, ks) for g in range(G)]
            trs = [x for c in rc for x in trreads(c)]
            dm = [x for c in dsched.get(s, []) for x in wdma(c)]
            xd = [x for r in ([0] if args.second == s else []) + xsched.get(s, []) for q in pair(r) for x in xdma(q)]
            if s == 0:
                for it in breads[:1] + trs + breads[1:] + dm + xd: emit(P, vm, it)
            else:
                rb = [[x] for x in breads + trs]
                db = dma_bundles(dm + xd) if (dm or xd) else []
                bl = mix(rb, db) if db else rb
                end = len(mf) - (args.tailgap if len(bl) <= len(mf) - args.tailgap else 0)
                if not db: end = max(len(rb), min(end, len(rb) + len(rb) // 2)) if rb else len(mf)
                spread_bundles(P, vm, mf, bl, 0, min(end, len(mf))) if bl else [P(m) for m in mf]
                stamp(P, args, 3 + s)
        else:
            pre = rowreads(QB, G)
            interleave(P, vm, mf[:9], pre)
            cv = cvts(ACC[0], 0) + cvts(ACC[0], 1) + cvts(ACC[0], 2)
            interleave(P, vm, mf[9:], cv)
    P(vm.wait(X(range(NXROWS))))
    P("s_barrier")
    P("L_main:")
    stamp(P, args, 15)

    def group(vm, accp, old, new, row, extra_first, e1, e2, tail=[]):
        if args.chain:
            mf = [mfma(accp, t, s, old + 4 * (s - 6), s == 6) for t in range(6) for s in range(6, 12)]
        else:
            mf = [mfma(accp, t, s, old + 4 * (s - 6), s == 6) for s in range(6, 12) for t in range(6)]
        interleave(P, vm, mf[:6], list(extra_first))
        interleave(P, vm, mf[6:], e1)
        if args.chain:
            mf = [mfma(accp, t, s, new + 4 * s, False) for t in range(6) for s in range(0, 6)]
        else:
            mf = [mfma(accp, t, s, new + 4 * s, False) for s in range(0, 6) for t in range(6)]
        P("s_waitcnt lgkmcnt(0)")
        reads = rowreads(old, row + 2)
        interleave(P, vm, mf, mix(reads, e2) + list(tail))

    P("s_waitcnt lgkmcnt(0)")
    E = lambda a: epilogue(a, sf)
    st0 = [store(0, sf), store(1, sf), store(2, sf), outadv()]
    if "nost" in EXP: st0 = [outadv()]
    free = [0]
    pend = list(range(1, G))
    g = G
    old, new = QB, PB
    firstp = True
    npeel = G - 1 if args.even else (G - 1) // 2 + 1
    while True:
        cur = free.pop(0)
        if firstp:
            e1 = st0; e2 = E(ACC[pend[0]]); done = [pend.pop(0)]
            if not args.even and pend:
                e1 = st0 + E(ACC[done[0]]); e2 = E(ACC[pend[0]]); done.append(pend.pop(0))
            extra = rowreads(PB, G + 1)
        else:
            done = [pend.pop(0)]
            e1 = E(ACC[done[0]]); e2 = []
            if pend:
                done.append(pend.pop(0)); e2 = E(ACC[done[1]])
            extra = []
        last = (len(pend) == 0)
        tail = []
        if last:
            tail = [S(f"s_sub_u32 s{S_CNT}, s{S_NG}, {g+1}"), V(f"v_add_u32 v{V_LDS}, {(g+1)*XROW}, v{V_LDS}")]
        group(vm, ACC[cur], old, new, g, extra, e1, e2, tail)
        if firstp: stamp(P, args, 16)
        firstp = False
        free += done
        pend.append(cur)
        old, new = new, old
        g += 1
        if last: break
    assert len(pend) == 1
    A1 = ACC[pend[0]]; A0 = ACC[free[0]]
    assert g <= 10, g
    if args.share and args.h0tail: assert (12 - g) % 2 == 1
    P("L_loop:")
    dec = [S(f"s_sub_u32 s{S_CNT}, s{S_CNT}, 1"), S(f"s_cmp_eq_u32 s{S_CNT}, 0")]
    def split(e):
        k = args.esplit
        return (e[:k], e[k:]) if k else (e, [])
    ea, eb = split(E(A1))
    group(None, A0, old, new, 0, [], ea, eb, tail=dec)
    P("s_cbranch_scc1 L_fin1")
    ea, eb = split(E(A0))
    group(None, A1, new, old, 1, [], ea, eb, tail=[V(f"v_add_u32 v{V_LDS}, {2*XROW}, v{V_LDS}")] + dec)
    P("s_cbranch_scc0 L_loop")
    def mid_reads():
        L = []
        for buf, row in ((PB, 0), (QB, 1)):
            for b in range(2):
                for ks in range(3):
                    off = row * XROW + (1 - b) * 224 + ks * 64
                    L.append(f"ds_read_b128 {rng('v', buf + 4 * (b * 3 + ks), 4)}, v{V_L12} offset:{off}")
        return L
    if args.share:
        for x in mid_reads(): P(x)
    else:
        P("s_nop 7")
    for it in E(A1): emit(P, None, it)
    P("s_branch L_done")
    P("L_fin1:")
    if args.share and args.h0tail:
        P(f"s_cmp_eq_u32 s{S_HALF}, 0")
        P("s_cbranch_scc0 L_fin1b")
        AP = [a for a in ACC[:4] if a not in (A0, A1)][0]
        def pm(t, s_, bf, first):
            k, b = wreg(s_, t)
            d = rng("v", AP + 4 * t, 4)
            c = rng("v", BIAS + 4 * t, 4) if first else d
            return f"v_mfma_f32_16x16x32_bf16 {d}, {rng(k, b, 4)}, {rng('v', bf, 4)}, {c}"
        mf = [pm(t, s_, new + 4 * (s_ - 6), s_ == 6) for t in range(4) for s_ in range(6, 12)]
        interleave(P, None, mf[:3], [])
        interleave(P, None, mf[3:], E(A0))
        P("s_waitcnt lgkmcnt(0)")
        mf = [pm(t, s_, old + 4 * s_, False) for t in range(4) for s_ in range(0, 6)]
        def st12(j):
            o = OUTP + 4 * j
            return (f"buffer_store_dwordx4 {rng('v', o, 4)}, v{V_OUT}, s[{S_O}:{S_O+3}], s{S_OUT12} offen offset:{64*j} {sf}".rstrip(), "st", C_ST)
        interleave(P, None, mf[:18], [])
        interleave(P, None, mf[18:], cvts(AP, 0) + [st12(0)])
        P("s_nop 7")
        for it in cvts(AP, 1) + [st12(1)]: emit(P, None, it)
        P("s_branch L_done2")
        P("L_fin1b:")
    if args.share:
        for x in mid_reads(): P(x)
    else:
        P("s_nop 7")
    for it in E(A0): emit(P, None, it)
    P("L_done:")
    if args.share:
        AP = [a for a in ACC[:4] if a not in (A0, A1)][0]
        if args.h0tail:
            P("s_waitcnt lgkmcnt(0)")
        else:
            P(f"s_cmp_eq_u32 s{S_HALF}, 0")
            P("s_waitcnt lgkmcnt(0)")
            P("s_cbranch_scc0 L_mid1")
        for hf in ([1] if args.h0tail else range(2)):
            if hf and not args.h0tail: P("L_mid1:")
            tl = [0, 1, 2, 3] if hf == 0 else [4, 5]
            order = [(s_, i, t) for s_ in list(range(6, 12)) + list(range(0, 6)) for i, t in enumerate(tl)]
            if args.chain:
                order = [(s_, i, t) for i, t in enumerate(tl) for s_ in list(range(6, 12)) + list(range(0, 6))]
            for s_, i, t in order:
                bf = (PB + 4 * (s_ - 6)) if s_ >= 6 else (QB + 4 * s_)
                if True:
                    k, b = wreg(s_, t)
                    d = rng("v", AP + 4 * i, 4)
                    c = rng("v", BIAS + 4 * t, 4) if s_ == 6 else d
                    P(f"v_mfma_f32_16x16x32_bf16 {d}, {rng(k, b, 4)}, {rng('v', bf, 4)}, {c}")
            P("s_nop 7")
            o = OUTP
            cv = lambda dst, a: [P(f"v_cvt_pk_bf16_f32 v{dst}, v{a}, v{a+1}"), P(f"v_cvt_pk_bf16_f32 v{dst+1}, v{a+2}, v{a+3}")]
            for i in range(0, len(tl), 2):
                j = tl[i] >> 1
                oo = o + 4 * (i >> 1)
                cv(oo, AP + 4 * i); cv(oo + 2, AP + 4 * i + 4)
                P(f"buffer_store_dwordx4 {rng('v', oo, 4)}, v{V_OUT}, s[{S_O}:{S_O+3}], s{S_OUT12} offen offset:{64*j} {sf}".rstrip())
            if hf == 0: P("s_branch L_done2")
        P("L_done2:")
    T = V_D
    if args.probe:
        a, b, K, wg = [int(x) for x in args.probe.split(",")]
        stamp(P, args, 17)
        P("s_waitcnt vmcnt(0)")
        stamp(P, args, 18)
        P("s_waitcnt lgkmcnt(0)")
        P(f"s_cmp_eq_u32 s2, {wg}")
        P("s_cbranch_scc0 L_end")
        P(f"s_sub_u32 s46, s{S_STAMP+2*b}, s{S_STAMP+2*a}")
        P(f"s_mul_i32 s46, s46, {K}")
        P(f"s_min_u32 s46, s46, 20000")
        P(f"s_add_u32 s46, s46, s{S_STAMP+2*18}")
        P("L_spin:")
        P("s_memrealtime s[50:51]")
        P("s_waitcnt lgkmcnt(0)")
        P("s_sub_u32 s53, s46, s50")
        P("s_cmp_gt_i32 s53, 0")
        P("s_cbranch_scc1 L_spin")
    elif args.stamps:
        stamp(P, args, 17)
        P("s_waitcnt vmcnt(0)")
        stamp(P, args, 18)
        P("s_waitcnt lgkmcnt(0)")
        P(f"s_lshl_b32 s46, s2, 2"); P(f"s_add_u32 s46, s46, s{S_WAVE}"); P(f"s_lshl_b32 s46, s46, {8 if args.stamps >= 4 else 6}")
        P(f"v_mov_b32 v{T}, s46")
        P(f"v_cmp_eq_u32 vcc, 0, v{V_LANE}")
        P("s_and_saveexec_b64 s[54:55], vcc")
        for i in range(19 if args.stamps >= 4 else 8):
            P(f"v_mov_b32 v{T+2}, s{S_STAMP+2*i}"); P(f"v_mov_b32 v{T+3}, s{S_STAMP+2*i+1}")
            P(f"global_store_dwordx2 v{T}, v[{T+2}:{T+3}], s[58:59] offset:{8*i}")
            P("s_nop 1")
    P("L_end:")
    P("s_endpgm")
    ftr = f"""
.section .rodata,"a"
.p2align 6
.amdhsa_kernel {NAME}
  .amdhsa_next_free_vgpr 512
  .amdhsa_next_free_sgpr 102
  .amdhsa_accum_offset 256
  .amdhsa_group_segment_fixed_size 0
  .amdhsa_kernarg_size 48
  .amdhsa_user_sgpr_count 2
  .amdhsa_user_sgpr_kernarg_segment_ptr 1
  .amdhsa_system_sgpr_workgroup_id_x 1
.end_amdhsa_kernel
"""
    return hdr + P.text() + ftr

def parser():
    ap = argparse.ArgumentParser()
    ap.add_argument("-o", default="standalone__transposed_strided__vision.s")
    ap.add_argument("--G", type=int, default=4)
    ap.add_argument("--store-flags", default="sc0 sc1")
    ap.add_argument("--stamps", type=int, default=0)
    ap.add_argument("--warm", type=int, default=1)
    ap.add_argument("--exp", default="")
    ap.add_argument("--probe", default="")
    ap.add_argument("--codepf", type=int, default=1)
    ap.add_argument("--xflags", default="nt")
    ap.add_argument("--wflags", default="")
    ap.add_argument("--even", type=int, default=1)
    ap.add_argument("--xrot", type=int, default=0)
    ap.add_argument("--map2d", type=int, default=0)
    ap.add_argument("--h0tail", type=int, default=0)
    ap.add_argument("--chain", type=int, default=0)
    ap.add_argument("--esplit", type=int, default=0)
    ap.add_argument("--share", type=int, default=0)
    ap.add_argument("--second", type=int, default=-1)
    ap.add_argument("--aorder", type=int, default=0)
    ap.add_argument("--tailgap", type=int, default=4)
    ap.add_argument("--barsteps", default="0,1,2,3,4,5,6,8")
    ap.add_argument("--rsched", default="0:0,1:1,2:2+3,3:4+5,4:6,5:7,6:8,7:9,8:10,9:11")
    ap.add_argument("--dsched", default="1:2+3+4,2:5+6,3:7+8,4:9,5:10,6:11")
    ap.add_argument("--xsched", default="4:5+6+7,5:8+9+10,6:11+12")
    ap.add_argument("--slots", default="r0,r1,b0,b1,b2,b3,r2,r3,r0,r1,r2,r3")
    return ap

if __name__ == "__main__":
    args = parser().parse_args()
    open(args.o, "w").write(gen(args))
```
